```python
import torch

def _softmax(x, axis=-1):
    return torch.softmax(x, dim=axis)
def _gelu(x):
    return torch.nn.functional.gelu(x, approximate="tanh")
def _silu(x):
    return torch.nn.functional.silu(x)
def _sigmoid(x):
    return torch.sigmoid(x)
def _layernorm(x, axis=-1, eps=1e-5):
    m = x.mean(dim=axis, keepdim=True)
    v = x.var(dim=axis, keepdim=True, unbiased=False)
    return (x - m) / torch.sqrt(v + eps)
def _scatter_add(tgt, idx, src, axis=0):
    return tgt.clone().index_add_(axis, idx, src)
def _segment_sum(src, seg, n):
    out = torch.zeros((n,) + src.shape[1:], dtype=src.dtype)
    return out.index_add_(0, seg, src)
def _pad(x, pw):
    flat = tuple(v for pair in reversed(pw) for v in pair)
    return torch.nn.functional.pad(x, flat)

kernel_name = 'gather_scatter__molecular_angular_gemnet__graph'

def setup_inputs():

    _w = (lambda a: (lambda t: t.to(torch.bfloat16) if t.is_floating_point() else t)(torch.as_tensor(a)))
    N, deg, De, L = 50000, 16, 16, 3
    E = N * deg
    T = E * deg
    NR = 8
    dist = torch.rand(E).to(float)
    angle = (torch.rand(T) * torch.pi).to(float)
    centers = torch.linspace(0.0, 1.0, NR).to(float)
    ang_freq = torch.arange(1, L + 1).to(float)
    return {
        "m": _w((lambda *s: torch.randn(*s, dtype=torch.bfloat16) * 0.05)(E, De)),
        "idx_in": _w((lambda lo, hi, *s: torch.randint(lo, hi, s))(0, E, T).to(torch.int64)),
        "idx_out": _w((lambda lo, hi, *s: torch.randint(lo, hi, s))(0, E, T).to(torch.int64)),
        "dist": _w(dist),
        "angle": _w(angle),
        "centers": _w(centers),
        "ang_freq": _w(ang_freq),
        "w_rbf": _w((lambda *s: torch.randn(*s, dtype=torch.bfloat16) * 0.2)(NR, De)),
        "w_sbf": _w((lambda *s: torch.randn(*s, dtype=torch.bfloat16) * 0.2)(NR * L, De)),
        "w_down": _w((lambda *s: torch.randn(*s, dtype=torch.bfloat16) * 0.2)(De, De)),
        "w_up": _w((lambda *s: torch.randn(*s, dtype=torch.bfloat16) * 0.2)(De, De)),
    }

def reference(m, idx_in, idx_out, dist, angle, centers, ang_freq, w_rbf, w_sbf, w_down, w_up):
    E, De = m.shape[0], m.shape[1]
    NR = centers.shape[0]
    L = ang_freq.shape[0]
    rbf = torch.exp(-10.0 * (dist[:, None] - centers[None, :]) ** 2)
    cbf = torch.cos(ang_freq[None, :] * angle[:, None])
    rbf_t = rbf[idx_out]
    sbf = torch.reshape(rbf_t[:, :, None] * cbf[:, None, :], (-1, NR * L))
    x = (m[idx_in] @ w_down) * (sbf @ w_sbf)
    agg = _segment_sum(x, idx_out, E)
    return m + (agg @ w_up) * (rbf @ w_rbf)
```

```python
import sys

E = 800000; T = 12800000; NT = 256
TILE = T // NT
EB = E // NT
RPL = 20
TL = TILE // RPL
TS = TL * 128
WS_DESC = NT * TS
WS_OPS = WS_DESC + NT * NT * 8
WS_STAMP = WS_OPS + 8192
LDS = 163840
PIVOT = 4

class Asm:
    def __init__(self): self.L = []
    def __call__(self, s):
        for ln in s.strip("\n").split("\n"):
            ln = ln.strip()
            if ln: self.L.append(ln if ln.endswith(":") else "    " + ln)
    def text(self): return "\n".join(self.L) + "\n"

def head(name):
    return f".text\n.globl {name}\n.p2align 8\n.type {name},@function\n{name}:\n"
def desc(name, vgpr, sgpr=102):
    accum = min(256, (vgpr + 3) // 4 * 4)
    return f""".section .rodata,"a"
.p2align 6
.amdhsa_kernel {name}
  .amdhsa_next_free_vgpr {vgpr}
  .amdhsa_next_free_sgpr {sgpr}
  .amdhsa_accum_offset {accum}
  .amdhsa_group_segment_fixed_size 0
  .amdhsa_kernarg_size 112
  .amdhsa_user_sgpr_count 2
  .amdhsa_user_sgpr_kernarg_segment_ptr 1
  .amdhsa_system_sgpr_workgroup_id_x 1
  .amdhsa_float_denorm_mode_32 3
.end_amdhsa_kernel
"""

def srd(a, d, lo, hi, off_s, size):
    a(f"""
    s_add_u32 s{d}, s{lo}, {off_s}
    s_addc_u32 s{d+1}, s{hi}, 0
    s_and_b32 s{d+1}, s{d+1}, 0xffff
    s_mov_b32 s{d+2}, {size}
    s_mov_b32 s{d+3}, 0x20000
    """)

def wave_scan(a, v, op="v_add_u32"):
    for m in ("row_shr:1 row_mask:0xf bank_mask:0xf bound_ctrl:1", "row_shr:2 row_mask:0xf bank_mask:0xf bound_ctrl:1",
              "row_shr:4 row_mask:0xf bank_mask:0xf bound_ctrl:1", "row_shr:8 row_mask:0xf bank_mask:0xf bound_ctrl:1",
              "row_bcast:15 row_mask:0xa bank_mask:0xf", "row_bcast:31 row_mask:0xc bank_mask:0xf"):
        a(f"s_nop 1\n{op}_dpp v{v}, v{v}, v{v} {m}")

def gen_operands(a, S_WAVE):
    a(f"""
    s_cmp_ge_u32 s2, 8
    s_cbranch_scc1 A_ops_done
    s_cmp_lg_u32 s{S_WAVE}, 15
    s_cbranch_scc1 A_ops_done
    s_load_dwordx8 s[8:15], s[0:1], 56
    v_and_b32 v24, 63, v0
    v_lshrrev_b32 v25, 5, v24
    v_bfe_u32 v26, v24, 2, 1
    v_bfe_u32 v27, v24, 3, 2
    v_and_b32 v28, 3, v24
    v_lshl_or_b32 v27, v27, 2, v28
    s_waitcnt lgkmcnt(0)
    s_cmp_ge_u32 s2, 5
    s_cbranch_scc1 A_ops_epi
    s_mov_b64 s[20:21], s[10:11]
    s_mov_b32 s22, 768
    s_cmp_ge_u32 s2, 3
    s_cbranch_scc1 A_ops_down
    s_mov_b64 s[16:17], s[10:11]
    s_mov_b32 s18, 768
    s_mov_b32 s24, 96
    s_lshl_b32 s25, s2, 5
    v_cmp_eq_u32 vcc, v25, v26
    v_lshlrev_b32 v29, 1, v27
    s_branch A_ops_load
    A_ops_down:
    s_mov_b64 s[16:17], s[12:13]
    s_mov_b32 s18, 512
    s_mov_b32 s24, 32
    s_mov_b32 s25, 0
    s_sub_u32 s26, s2, 3
    v_cmp_eq_u32 vcc, s26, v26
    v_lshlrev_b32 v29, 1, v27
    v_lshl_add_u32 v29, v25, 8, v29
    s_branch A_ops_load
    A_ops_epi:
    s_mov_b64 s[20:21], s[8:9]
    s_mov_b32 s22, 256
    s_mov_b64 s[16:17], s[14:15]
    s_mov_b32 s18, 512
    s_sub_u32 s25, s2, 5
    s_lshl_b32 s25, s25, 8
    s_cmp_lg_u32 s2, 7
    s_cbranch_scc1 A_ops_epi2
    s_mov_b64 s[16:17], s[8:9]
    s_mov_b32 s18, 256
    s_mov_b32 s25, 0
    A_ops_epi2:
    s_mov_b32 s24, 32
    v_lshrrev_b32 v28, 3, v27
    v_cmp_eq_u32 vcc, v25, v28
    v_and_b32 v28, 7, v27
    v_lshl_or_b32 v28, v26, 3, v28
    v_lshlrev_b32 v29, 1, v28
    A_ops_load:
    s_and_b32 s17, s17, 0xffff
    s_mov_b32 s19, 0x20000
    s_and_b32 s21, s21, 0xffff
    s_mov_b32 s23, 0x20000
    v_mov_b32 v28, 0x10000
    v_cndmask_b32 v29, v28, v29, vcc
    v_lshlrev_b32 v28, 2, v24
    buffer_load_dword v40, v28, s[20:23], 0 offen
    buffer_load_dword v41, v28, s[20:23], 0 offen offset:256
    buffer_load_dword v42, v28, s[20:23], 0 offen offset:512
    """)
    for j in range(8):
        a(f"buffer_load_ushort v{32+j}, v29, s[16:19], s25 offen\ns_add_u32 s25, s25, s24")
    a("s_waitcnt vmcnt(8)\nv_mov_b32 v43, 0")
    for j in range(3):
        a(f"v_bfe_u32 v44, v{40+j}, 7, 8\nv_bfe_u32 v45, v{40+j}, 23, 8\nv_max3_u32 v43, v43, v44, v45")
    wave_scan(a, 43, "v_max_u32")
    a(f"""
    s_nop 0
    v_readlane_b32 s26, v43, 63
    s_sub_u32 s27, s2, 3
    s_cmp_lt_u32 s27, 4
    s_cselect_b32 s27, 1, 0
    s_sub_i32 s24, 140, s26
    s_sub_i32 s25, s26, 154
    s_cmp_eq_u32 s27, 1
    s_cselect_b32 s24, s25, s24
    s_waitcnt vmcnt(0)
    """)
    for j in range(8):
        a(f"v_lshlrev_b32 v{32+j}, 16, v{32+j}\nv_ldexp_f32 v{32+j}, v{32+j}, s24")
    a("s_cbranch_scc1 A_ops_bf16")
    for j in range(4): a(f"v_cvt_pk_f16_f32 v{40+j}, v{32+2*j}, v{33+2*j}")
    a("s_branch A_ops_store\nA_ops_bf16:")
    for j in range(4): a(f"v_cvt_pk_bf16_f32 v{40+j}, v{32+2*j}, v{33+2*j}")
    a(f"A_ops_store:\ns_lshl_b32 s24, s2, 10\ns_add_u32 s24, s24, {WS_OPS}")
    srd(a, 16, 30, 31, "s24", 1024)
    a(f"""
    v_lshlrev_b32 v28, 4, v24
    buffer_store_dwordx4 v[40:43], v28, s[16:19], 0 offen
    s_waitcnt vmcnt(0)
    A_ops_done:
    """)

def gen_part(name, opt):
    a = Asm()
    stamps = opt.get("stamps", False)
    ldpol = opt.get("ldpol", ""); stpol = opt.get("stpol", "")
    NG = 13
    R0 = 24
    R = lambda g, j: R0 + 8 * g + j
    S_IN, S_OUT, S_ANG, S_REC, S_DSC = 8, 12, 16, 20, 24
    S_G16 = 32
    S_G8 = 48
    S_LAST = 62
    S_WAVE = 64; S_DIV = 65; S_NEG = 66; S_HI = 67; S_TOT = 68; S_T0 = 69; S_T1 = 70; S_NB = 71
    S_ST = 72
    nst = [0]
    def stamp():
        if stamps:
            a(f"s_memrealtime s[{S_ST+2*nst[0]}:{S_ST+2*nst[0]+1}]"); nst[0] += 1
    a(f"""
    s_cmp_ge_u32 s2, {NT}
    s_cbranch_scc1 A_end
    s_load_dwordx4 s[4:7], s[0:1], 8
    s_load_dwordx2 s[28:29], s[0:1], 32
    s_load_dwordx2 s[30:31], s[0:1], 104
    """)
    stamp()
    for g in range(NG):
        a(f"s_mov_b32 s{S_G16+g}, {g*16384}\ns_mov_b32 s{S_G8+g}, {g*8192}")
    a(f"""
    v_lshlrev_b32 v1, 4, v0
    v_lshlrev_b32 v2, 3, v0
    v_lshlrev_b32 v3, 5, v0
    v_lshrrev_b32 v4, 6, v0
    v_cmp_gt_u32 vcc, {TILE//4 - 12*1024}, v0
    s_mov_b64 s[{S_LAST}:{S_LAST+1}], vcc
    v_readfirstlane_b32 s{S_WAVE}, v4
    s_mov_b32 s{S_DIV}, {(2**32 + EB - 1)//EB}
    s_mov_b32 s{S_NEG}, {-EB}
    s_mov_b32 s{S_HI}, 0xffff0000
    s_mul_i32 s{S_T0}, s2, {TILE*4}
    s_mul_i32 s{S_T1}, s2, {TILE*2}
    s_waitcnt lgkmcnt(0)
    """)
    gen_operands(a, S_WAVE)
    srd(a, S_IN, 4, 5, f"s{S_T0}", TILE * 4)
    srd(a, S_OUT, 6, 7, f"s{S_T0}", TILE * 4)
    for g in range(NG):
        a(f"buffer_load_dwordx4 v[{R(g,0)}:{R(g,3)}], v1, s[{S_IN}:{S_IN+3}], s{S_G16+g} offen {ldpol}")
        a(f"buffer_load_dwordx4 v[{R(g,4)}:{R(g,7)}], v1, s[{S_OUT}:{S_OUT+3}], s{S_G16+g} offen {ldpol}")
    srd(a, S_ANG, 28, 29, f"s{S_T1}", TILE * 2)
    a(f"s_mul_i32 s{S_T0}, s2, {TS}")
    srd(a, S_REC, 30, 31, f"s{S_T0}", TS)
    a(f"s_lshl_b32 s{S_T0}, s2, 11\ns_add_u32 s{S_T0}, s{S_T0}, {WS_DESC}")
    srd(a, S_DSC, 30, 31, f"s{S_T0}", NT * 8)
    a("""
    v_mov_b32 v8, 0
    v_mov_b32 v9, 0
    v_mov_b32 v10, 0
    v_mov_b32 v11, 0
    v_mov_b32 v5, 1
    ds_write_b128 v3, v[8:11]
    ds_write_b128 v3, v[8:11] offset:16
    s_waitcnt lgkmcnt(0)
    s_barrier
    """)
    for g in range(NG):
        r = [R(g, j) for j in range(8)]
        a(f"s_waitcnt vmcnt({24 - 2*g})")
        if g == NG - 1:
            a(f"s_mov_b64 exec, s[{S_LAST}:{S_LAST+1}]\ns_cbranch_execz A_p1_done")
        t = 8 + 4 * (g & 1)
        for j in range(4): a(f"v_mul_hi_u32 v{t+j}, v{r[4+j]}, s{S_DIV}")
        for j in range(4): a(f"v_mad_i32_i24 v{r[4+j]}, v{t+j}, s{S_NEG}, v{r[4+j]}")
        a(f"""
        v_lshl_or_b32 v{r[0]}, v{r[0]}, 12, v{r[4]}
        v_lshl_or_b32 v{r[4]}, v{r[2]}, 12, v{r[6]}
        v_lshl_or_b32 v{r[2]}, v{r[1]}, 12, v{r[5]}
        v_lshl_or_b32 v{r[5]}, v{r[3]}, 12, v{r[7]}
        """)
        pk = [r[0], r[2], r[4], r[5]]
        for j in range(4): a(f"v_alignbit_b32 v{t+j}, v{t+j}, v{pk[j]}, 25")
        for j in range(4): a(f"v_and_b32 v{t+j}, -4, v{t+j}\nds_add_u32 v{t+j}, v5")
        a(f"v_lshl_or_b32 v{r[1]}, v{t+1}, 16, v{t}\nv_lshl_or_b32 v{r[3]}, v{t+3}, 16, v{t+2}")
    a("A_p1_done:\ns_mov_b64 exec, -1\ns_waitcnt lgkmcnt(0)\ns_barrier")
    stamp()
    def ang_loads():
        for g in range(NG):
            a(f"buffer_load_dwordx2 v[{R(g,6)}:{R(g,7)}], v2, s[{S_ANG}:{S_ANG+3}], s{S_G8+g} offen {ldpol}")
    a(f"""
    ds_read_b128 v[8:11], v3
    ds_read_b128 v[12:15], v3 offset:16
    """)
    if opt.get("ang_first", True): ang_loads()
    a(f"""
    v_and_b32 v6, 3, v0
    s_waitcnt lgkmcnt(0)
    v_add_u32 v9, v8, v9
    v_add_u32 v10, v9, v10
    v_add_u32 v11, v10, v11
    v_add_u32 v12, v11, v12
    v_add_u32 v13, v12, v13
    v_add_u32 v14, v13, v14
    v_add_u32 v15, v14, v15
    v_mov_b32 v18, v15
    """)
    wave_scan(a, 18)
    a(f"""
    s_lshl_b32 s{S_T0}, s{S_WAVE}, 2
    s_add_u32 s{S_T0}, s{S_T0}, 32768
    v_readlane_b32 s{S_T1}, v18, 63
    v_sub_u32 v18, v18, v15
    v_mov_b32 v19, s{S_T0}
    v_mov_b32 v20, s{S_T1}
    v_and_b32 v21, 15, v0
    v_lshlrev_b32 v21, 2, v21
    ds_write_b32 v19, v20
    v_add_u32_dpp v16, v15, v15 quad_perm:[1,0,3,2] row_mask:0xf bank_mask:0xf
    s_waitcnt lgkmcnt(0)
    s_barrier
    ds_read_b32 v19, v21 offset:32768
    v_add_u32_dpp v16, v16, v16 quad_perm:[2,3,0,1] row_mask:0xf bank_mask:0xf
    s_waitcnt lgkmcnt(0)
    v_mov_b32 v20, v19
    """)
    for sh in (1, 2, 4, 8):
        a(f"s_nop 1\nv_add_u32_dpp v20, v20, v20 row_shr:{sh} row_mask:0xf bank_mask:0xf bound_ctrl:1")
    a(f"""
    v_sub_u32 v19, v20, v19
    s_nop 0
    v_readlane_b32 s{S_T0}, v19, s{S_WAVE}
    s_nop 1
    v_add_u32 v7, s{S_T0}, v18
    """)
    for i in range(8): a(f"v_add_u32 v{8+i}, v7, v{8+i}")
    a(f"""
    ds_write2_b32 v3, v7, v8 offset0:0 offset1:1
    ds_write2_b32 v3, v9, v10 offset0:2 offset1:3
    ds_write2_b32 v3, v11, v12 offset0:4 offset1:5
    ds_write2_b32 v3, v13, v14 offset0:6 offset1:7
    v_mov_b32 v20, v7
    s_mov_b32 s{S_T1}, 52429
    v_mov_b32 v22, {(RPL - 1 - PIVOT) * 52429}
    s_waitcnt lgkmcnt(0)
    s_barrier
    """)
    if not opt.get("ang_first", True): ang_loads()
    for i in range(9): a(f"v_mad_u32_u24 v{7+i}, v{7+i}, s{S_T1}, v22\nv_lshrrev_b32 v{7+i}, 20, v{7+i}")
    a("v_mov_b32 v17, 0")
    for i in range(7, -1, -1):
        a(f"v_cmp_ne_u32 vcc, v{7+i}, v{8+i}\ns_nop 1\nv_addc_co_u32 v17, vcc, v17, v17, vcc")
    a(f"""
    v_lshlrev_b32 v6, 3, v6
    v_lshlrev_b32 v17, v6, v17
    v_mul_u32_u24 v18, s{S_T1}, v20
    v_add3_u32 v19, v20, v16, {RPL - 1}
    v_or_b32_dpp v17, v17, v17 quad_perm:[1,0,3,2] row_mask:0xf bank_mask:0xf
    v_lshrrev_b32 v18, 20, v18
    v_mul_u32_u24 v19, s{S_T1}, v19
    v_or_b32_dpp v17, v17, v17 quad_perm:[2,3,0,1] row_mask:0xf bank_mask:0xf
    v_lshrrev_b32 v19, 20, v19
    v_sub_u32 v19, v19, v18
    v_sub_u32 v18, v7, v18
    v_lshl_or_b32 v17, v17, 1, v18
    v_bcnt_u32_b32 v18, v17, 0
    v_sub_u32 v18, v19, v18
    v_min_u32 v18, 6, v18
    v_bfm_b32 v18, v18, 26
    v_or_b32 v19, v17, v18
    v_cmp_ne_u32 vcc, 0, v16
    v_lshl_or_b32 v18, v20, 16, v16
    v_lshlrev_b32 v21, 1, v0
    v_cndmask_b32 v19, 0, v19, vcc
    s_mov_b32 exec_lo, 0x11111111
    s_mov_b32 exec_hi, 0x11111111
    buffer_store_dwordx2 v[18:19], v21, s[{S_DSC}:{S_DSC+3}], 0 offen
    s_mov_b64 exec, -1
    """)
    stamp()
    a("s_mov_b32 s{0}, 0xffff".format(S_T1))
    def p2_issue(g):
        r = [R(g, j) for j in range(8)]; t = 8 + 4 * (g % 3)
        a(f"""
        v_and_b32 v{t}, s{S_T1}, v{r[1]}
        v_lshrrev_b32 v{t+1}, 16, v{r[1]}
        v_and_b32 v{t+2}, s{S_T1}, v{r[3]}
        v_lshrrev_b32 v{t+3}, 16, v{r[3]}
        """)
        for j in range(4): a(f"ds_add_rtn_u32 v{t+j}, v{t+j}, v5")
    def p2_fin(g):
        r = [R(g, j) for j in range(8)]; t = 8 + 4 * (g % 3)
        a(f"""
        v_lshl_or_b32 v{r[1]}, v{r[6]}, 16, v{t}
        v_and_or_b32 v{r[3]}, v{r[6]}, s{S_HI}, v{t+1}
        v_mov_b32 v{r[6]}, v{r[5]}
        v_lshl_or_b32 v{r[5]}, v{r[7]}, 16, v{t+2}
        v_and_or_b32 v{r[7]}, v{r[7]}, s{S_HI}, v{t+3}
        """)
    p2_issue(0); p2_issue(1)
    for g in range(NG - 1):
        if g + 2 < NG - 1:
            p2_issue(g + 2); n = 8
        else:
            n = 4 * (NG - 2 - g)
        a(f"s_waitcnt lgkmcnt({n}) vmcnt({NG - g})")
        p2_fin(g)
    a(f"s_mov_b64 exec, s[{S_LAST}:{S_LAST+1}]\ns_cbranch_execz A_p2_done")
    p2_issue(NG - 1)
    a("s_waitcnt lgkmcnt(0) vmcnt(1)")
    p2_fin(NG - 1)
    a("A_p2_done:\ns_mov_b64 exec, -1")
    a(f"""
    v_lshrrev_b32 v6, 3, v0
    v_mul_u32_u24 v6, {RPL*8}, v6
    v_bfe_u32 v7, v0, 1, 2
    v_lshl_add_u32 v6, v7, 3, v6
    v_and_b32 v7, 1, v0
    v_lshl_add_u32 v4, v7, 2, v6
    v_lshl_add_u32 v6, v7, 6, v6
    s_mov_b32 s{S_DIV}, 0x07060302
    s_barrier
    """)
    stamp()
    NPASS = 3; PER = LDS // 8
    for k in range(NPASS):
        a(f"s_mov_b32 s{S_NB}, {(-k * LDS) & 0xffffffff}")
        for g in range(NG):
            if g == NG - 1:
                a(f"s_mov_b64 exec, s[{S_LAST}:{S_LAST+1}]\ns_cbranch_execz A_st_done{k}")
            for j in range(4):
                t = 8 + (g * 4 + j) % 8
                a(f"v_mad_u32_u16 v{t}, v{R(g,2*j+1)}, 8, s{S_NB}\nds_write_b64 v{t}, v[{R(g,2*j)}:{R(g,2*j+1)}]")
        a(f"A_st_done{k}:\ns_mov_b64 exec, -1\ns_waitcnt lgkmcnt(0)\ns_barrier")
        stamp()
        nstep = 8 if k < NPASS - 1 else -(-(TL - 2048) // 128)
        def rd(i):
            b = 8 + 4 * (i % 3)
            if i % 3 == 0:
                a(f"v_add_u32 v2, {i*20480}, v6\nv_add_u32 v3, {i*20480}, v4")
            o = (i % 3) * 20480
            a(f"ds_read_b64 v[{b}:{b+1}], v2 offset:{o}\nds_read_b64 v[{b+2}:{b+3}], v2 offset:{o+32}\nds_read_b32 v{20 + i % 3}, v3 offset:{o+128}")
        def st(i, left):
            b = 8 + 4 * (i % 3)
            a(f"s_mov_b32 s{S_T0}, {k*131072 + i*16384}\ns_waitcnt lgkmcnt({3*left})")
            a(f"v_perm_b32 v{b+1}, v{b+3}, v{b+1}, s{S_DIV}\nv_mov_b32 v{b+3}, v{20 + i % 3}")
            a(f"buffer_store_dwordx4 v[{b}:{b+3}], v1, s[{S_REC}:{S_REC+3}], s{S_T0} offen {stpol}\ns_nop 0")
        for i in range(min(2, nstep)): rd(i)
        for i in range(nstep):
            if i + 2 < nstep:
                rd(i + 2); left = 2
            else:
                left = nstep - 1 - i
            st(i, left)
        if k < NPASS - 1:
            a("s_barrier")
        stamp()
    if stamps:
        a(f"s_waitcnt vmcnt(0)")
        stamp()
        a(f"""
        s_waitcnt lgkmcnt(0)
        s_lshl_b32 s{S_T0}, s2, 10
        s_add_u32 s{S_T0}, s{S_T0}, {WS_STAMP}
        """)
        srd(a, S_DSC, 30, 31, f"s{S_T0}", 1024)
        a(f"s_lshl_b32 s{S_T1}, s{S_WAVE}, 6\nv_mov_b32 v9, s{S_T1}\ns_mov_b64 exec, 1")
        for i in range(nst[0]):
            a(f"v_mov_b32 v8, s{S_ST+2*i}\nbuffer_store_dword v8, v9, s[{S_DSC}:{S_DSC+3}], 0 offen offset:{4*i}\ns_nop 1")
    a("A_end:\ns_endpgm")
    return head(name) + a.text(), desc(name, 128), nst[0]
```

```python
from gen import *
L_CTR = 0
L_AB = 16
L_C = L_AB + 2048
L_LIST = L_C + 1024
JMAX = 11; CAP = NT * JMAX
L_ROW = 13840
SENT = 0x7f817f81
INV2PI = 0.15915494309189535

def gen_main(name, opt):
    a = Asm()
    NW = opt.get("nw", 12); NTH = NW * 64
    stamps = opt.get("stamps", False)
    recpol = opt.get("recpol", ""); gpol = opt.get("gpol", ""); outpol = opt.get("outpol", "")
    prio = opt.get("prio", True)
    memonly = opt.get("memonly", False)
    S_M, S_REC, S_X, S_Y = 8, 12, 16, 20
    S_CEN = 24
    S_WAVE, S_NCH, S_TK, S_JB, S_ROUND, S_NR, S_FAST, S_T0, S_T1, S_T2, S_BASE, S_BIT, S_LOW, S_ANY = range(32, 46)
    S_PM, S_LM, S_RET, S_DRN, S_SAVE = 46, 48, 50, 52, 54
    S_PM_, S_LM_, S_RET_, S_DRN_, S_SAVE_ = (f"s[{x}:{x+1}]" for x in (S_PM, S_LM, S_RET, S_DRN, S_SAVE))
    P_M, P_DIST, P_CEN, P_OUT, P_WS = 56, 58, 60, 62, 64
    S_CRAW = 68
    S_ST = 72
    LANE = 1
    WG = [4, 8, 12]; WD = [16, 20]
    IX = [24, 26]; RP = 28; SE = 30; VQ = 31; EO = 32
    RB = 34; PK = 42; AN = 47; INV = 52; F0 = 53
    GA = 58; DM = 66; DG = 82; RF = 98; SB = 102; C0 = 114; LK = 119; AC = 120; TT = 128; PE = 132; PA = 148
    NV = 152
    nst = [0]
    def stamp():
        if stamps:
            a(f"s_memrealtime s[{S_ST+2*nst[0]}:{S_ST+2*nst[0]+1}]"); nst[0] += 1
    v4 = lambda r: f"v[{r}:{r+3}]"
    v2 = lambda r: f"v[{r}:{r+1}]"
    v16 = lambda r: f"v[{r}:{r+15}]"
    NR = -(-EB // NTH)
    a(f"""
    s_cmp_ge_u32 s2, {NT}
    s_cbranch_scc1 B_end
    s_load_dwordx2 s[{P_WS}:{P_WS+1}], s[0:1], 104
    s_load_dwordx2 s[{P_M}:{P_M+1}], s[0:1], 0
    s_load_dwordx2 s[{P_DIST}:{P_DIST+1}], s[0:1], 24
    s_load_dwordx2 s[{P_CEN}:{P_CEN+1}], s[0:1], 40
    s_load_dwordx2 s[{P_OUT}:{P_OUT+1}], s[0:1], 88
    """)
    stamp()
    a(f"""
    v_and_b32 v{LANE}, 63, v0
    v_lshrrev_b32 v2, 6, v0
    v_lshlrev_b32 v3, 11, v0
    v_readfirstlane_b32 s{S_WAVE}, v2
    s_mov_b32 m0, 0
    s_lshl_b32 s{S_T0}, s2, 3
    s_mul_i32 s{S_T1}, s2, {EB*2}
    s_waitcnt lgkmcnt(0)
    s_load_dwordx4 s[{S_CRAW}:{S_CRAW+3}], s[{P_CEN}:{P_CEN+1}], 0
    """)
    srd(a, S_X, P_WS, P_WS + 1, WS_DESC, NT * NT * 8)
    a(f"buffer_load_dwordx2 v[{GA}:{GA+1}], v3, s[{S_X}:{S_X+3}], s{S_T0} offen")
    srd(a, S_Y, P_DIST, P_DIST + 1, f"s{S_T1}", EB * 2)
    a(f"v_lshlrev_b32 v2, 1, v0")
    for k in range(NR):
        a(f"s_mov_b32 s{S_T0}, {k*NTH*2}\nbuffer_load_ushort v{PE+k}, v2, s[{S_Y}:{S_Y+3}], s{S_T0} offen")
    srd(a, S_X, P_WS, P_WS + 1, WS_OPS, 8192)
    a(f"v_lshlrev_b32 v2, 4, v{LANE}\ns_mov_b32 s{S_T0}, 4096")
    for k in range(4): a(f"buffer_load_dwordx4 {v4(4+4*k)}, v2, s[{S_X}:{S_X+3}], 0 offen offset:{1024*k}")
    a(f"buffer_load_dwordx4 {v4(20)}, v2, s[{S_X}:{S_X+3}], s{S_T0} offen")
    NLD = NR + 5
    a(f"""
    s_mov_b32 s{S_M}, s{P_M}
    s_and_b32 s{S_M+1}, s{P_M+1}, 0xffff
    s_or_b32 s{S_M+1}, s{S_M+1}, {32 << 16}
    s_mov_b32 s{S_M+2}, {E}
    s_mov_b32 s{S_M+3}, 0x20000
    s_mov_b32 s{S_REC}, s{P_WS}
    s_and_b32 s{S_REC+1}, s{P_WS+1}, 0xffff
    s_or_b32 s{S_REC+1}, s{S_REC+1}, {128 << 16}
    s_mov_b32 s{S_REC+2}, {NT*TL}
    s_mov_b32 s{S_REC+3}, 0x20000
    v_lshrrev_b32 v2, 5, v{LANE}
    v_lshlrev_b32 v{IX[0]+1}, 4, v2
    v_lshlrev_b32 v{IX[1]+1}, 4, v2
    v_and_b32 v{VQ}, 3, v{LANE}
    v_lshlrev_b32 v{RP+1}, 5, v{VQ}
    v_lshrrev_b32 v2, 2, v{LANE}
    v_lshlrev_b32 v{EO}, 2, v2
    v_mov_b32 v{SE}, {SENT}
    s_mov_b64 {S_PM_}, 0
    s_mov_b32 s{S_ROUND}, 0
    s_mov_b32 s{S_ANY}, 0
    s_mov_b32 s{S_FAST}, 0
    s_getpc_b64 {S_DRN_}
    B_pc:
    s_add_u32 s{S_DRN}, s{S_DRN}, B_drain-B_pc
    s_addc_u32 s{S_DRN+1}, s{S_DRN+1}, 0
    """)
    a(f"v_mul_u32_u24 v3, 48, v0")
    for j in range(4): a(f"v_mov_b32 v{AC+j}, 0")
    for k in range(NR):
        if k: a(f"v_add_u32 v3, {48*NTH}, v3")
        a(f"ds_write_b128 v3, {v4(AC)} offset:{L_ROW}\nds_write_b128 v3, {v4(AC)} offset:{L_ROW+16}")
    a(f"""
    s_cmp_ge_u32 s{S_WAVE}, 4
    s_cbranch_scc1 B_desc_done
    s_mov_b32 s{S_T0}, 52429
    s_waitcnt vmcnt({NLD})
    v_lshrrev_b32 v{DM+2}, 16, v{GA}
    v_and_b32 v{DM+3}, 0xffff, v{GA}
    v_mul_u32_u24 v{DM+4}, s{S_T0}, v{DM+2}
    v_lshrrev_b32 v{DM+4}, 20, v{DM+4}
    v_mul_u32_u24 v{DM+5}, {RPL}, v{DM+4}
    v_sub_u32 v{DM+5}, v{DM+2}, v{DM+5}
    v_add_u32 v{DM+7}, v{DM+5}, v{DM+3}
    v_add_u32 v{DM+8}, {RPL-1}, v{DM+7}
    v_mul_u32_u24 v{DM+8}, s{S_T0}, v{DM+8}
    v_cmp_ne_u32 vcc, 0, v{DM+3}
    v_lshrrev_b32 v{DM+8}, 20, v{DM+8}
    v_mul_u32_u24 v{DM+6}, {TL}, v0
    v_cndmask_b32 v{DM+8}, 0, v{DM+8}, vcc
    v_add_u32 v{DM+6}, v{DM+6}, v{DM+4}
    v_lshl_or_b32 v{DM+6}, v{DM+5}, 20, v{DM+6}
    v_lshl_or_b32 v{DM+7}, v{DM+8}, 16, v{DM+7}
    v_lshlrev_b32 v2, 3, v0
    v_lshlrev_b32 v3, 2, v0
    ds_write_b64 v2, {v2(DM+6)} offset:{L_AB}
    ds_write_b32 v3, v{GA+1} offset:{L_C}
    B_desc_done:
    s_waitcnt lgkmcnt(0)
    s_barrier
    """)
    stamp()
    for r in range(8):
        if r & 1: a(f"s_and_b32 s{S_CEN+r}, s{S_CRAW+r//2}, 0xffff0000")
        else: a(f"s_lshl_b32 s{S_CEN+r}, s{S_CRAW+r//2}, 16")
    LN = DM; MK = DM + 4; JJ = DM + 8; X0 = DM + 12; X1 = DM + 13; X2 = DM + 14; TAU = DG
    a(f"""
    B_round:
    v_lshlrev_b32 v2, 3, v{LANE}
    v_lshlrev_b32 v3, 2, v{LANE}
    """)
    for u in range(4):
        a(f"ds_read_u16 v{LN+u}, v2 offset:{L_AB + 512*u + 6}\nds_read_b32 v{MK+u}, v3 offset:{L_C + 256*u}\nv_add_u32 v{TAU+u}, {64*u}, v{LANE}")
    a(f"""
    s_mul_i32 s{S_JB}, s{S_ROUND}, {JMAX}
    s_cmp_lg_u32 s{S_ROUND}, 0
    s_waitcnt lgkmcnt(0)
    s_cbranch_scc1 B_generic
    v_add_u32 v{X0}, v{LN}, v{LN+1}
    v_add3_u32 v{X0}, v{X0}, v{LN+2}, v{LN+3}
    v_bcnt_u32_b32 v{X1}, v{MK}, 0
    v_bcnt_u32_b32 v{X1}, v{MK+1}, v{X1}
    v_bcnt_u32_b32 v{X1}, v{MK+2}, v{X1}
    v_bcnt_u32_b32 v{X1}, v{MK+3}, v{X1}
    v_cmp_ne_u32 vcc, v{X0}, v{X1}
    """)
    wave_scan(a, X0)
    a(f"""
    s_mov_b32 s{S_NR}, 1
    v_readlane_b32 s{S_NCH}, v{X0}, 63
    s_cmp_lg_u64 vcc, 0
    s_cbranch_scc1 B_generic0
    s_cmp_le_u32 s{S_NCH}, {CAP}
    s_cbranch_scc1 B_build
    B_generic0:
    v_max_u32 v{X0}, v{LN}, v{LN+1}
    v_max3_u32 v{X0}, v{X0}, v{LN+2}, v{LN+3}
    """)
    wave_scan(a, X0, "v_max_u32")
    a(f"""
    s_nop 0
    v_readlane_b32 s{S_NR}, v{X0}, 63
    s_add_u32 s{S_NR}, s{S_NR}, {JMAX-1}
    s_mul_i32 s{S_NR}, s{S_NR}, {(2**20 + JMAX - 1)//JMAX}
    s_lshr_b32 s{S_NR}, s{S_NR}, 20
    B_generic:
    v_mov_b32 v{X0}, 0
    """)
    for u in range(4):
        a(f"v_subrev_u32 v{X1}, s{S_JB}, v{LN+u}\nv_med3_i32 v{X1}, v{X1}, 0, {JMAX}\nv_bfm_b32 v{MK+u}, v{X1}, 0\nv_add_u32 v{X0}, v{X0}, v{X1}")
    wave_scan(a, X0)
    a(f"""
    s_nop 0
    v_readlane_b32 s{S_NCH}, v{X0}, 63
    B_build:
    v_or_b32 v{X0}, v{MK}, v{MK+1}
    v_or3_b32 v{X2}, v{X0}, v{MK+2}, v{MK+3}
    s_mov_b32 s{S_T2}, s{S_WAVE}
    s_cmp_lg_u32 s{S_WAVE}, {NW-1}
    s_cbranch_scc1 B_bit
    v_mov_b32 v{X0}, 0x8000
    v_add_u32 v{X1}, s{S_NCH}, v{LANE}
    v_lshlrev_b32 v{X1}, 1, v{X1}
    v_mov_b32 v2, {L_CTR}
    v_mov_b32 v3, {NW*64}
    ds_write_b16 v{X1}, v{X0} offset:{L_LIST}
    ds_write_b32 v2, v3
    B_bit:
    s_lshl_b32 s{S_BIT}, 1, s{S_T2}
    s_sub_u32 s{S_LOW}, s{S_BIT}, 1
    v_and_b32 v{X0}, s{S_BIT}, v{X2}
    v_cmp_ne_u32 vcc, 0, v{X0}
    s_cbranch_vccz B_bit_next
    """)
    for u in range(4):
        a(f"v_and_b32 v{JJ+u}, s{S_LOW}, v{MK+u}\nv_bcnt_u32_b32 v{JJ+u}, v{JJ+u}, 0")
    a(f"v_add_u32 v{X0}, v{JJ}, v{JJ+1}\nv_add3_u32 v{X0}, v{X0}, v{JJ+2}, v{JJ+3}")
    wave_scan(a, X0)
    a(f"s_nop 0\nv_readlane_b32 s{S_BASE}, v{X0}, 63")
    for u in range(4):
        a(f"""
        v_and_b32 v{X0}, s{S_BIT}, v{MK+u}
        v_cmp_ne_u32 vcc, 0, v{X0}
        v_lshl_or_b32 v{X1}, v{JJ+u}, 8, v{TAU+u}
        v_mov_b32 v{X0}, s{S_BASE}
        v_mbcnt_lo_u32_b32 v{X0}, vcc_lo, v{X0}
        v_mbcnt_hi_u32_b32 v{X0}, vcc_hi, v{X0}
        s_bcnt1_i32_b64 s{S_T0}, vcc
        v_lshlrev_b32 v{X0}, 1, v{X0}
        s_add_u32 s{S_BASE}, s{S_BASE}, s{S_T0}
        s_mov_b64 exec, vcc
        ds_write_b16 v{X0}, v{X1} offset:{L_LIST}
        s_mov_b64 exec, -1
        """)
    a(f"""
    B_bit_next:
    s_add_u32 s{S_T2}, s{S_T2}, {NW}
    s_cmp_lt_u32 s{S_T2}, 32
    s_cbranch_scc1 B_bit
    s_add_u32 s{S_NCH}, s{S_NCH}, 15
    s_lshr_b32 s{S_NCH}, s{S_NCH}, 4
    s_lshl_b32 s{S_NCH}, s{S_NCH}, 6
    s_lshl_b32 s{S_TK}, s{S_WAVE}, 6
    v_mov_b32 v{F0}, s{S_TK}
    s_waitcnt lgkmcnt(0)
    s_barrier
    """)
    stamp()
    def f_ticket(): a(f"ds_append v{F0} offset:{L_CTR}")
    def f_entry_pre():
        a(f"""
        v_readfirstlane_b32 s{S_TK}, v{F0}
        v_min_u32 v{F0}, s{S_NCH}, v{F0}
        v_add_u32 v{F0}, v{F0}, v{EO}
        v_lshrrev_b32 v{F0}, 1, v{F0}
        """)
    def f_entry(): a(f"ds_read_i16 v{F0}, v{F0} offset:{L_LIST}")
    def f_desc_pre(): a(f"v_and_b32 v{F0+1}, 0xff, v{F0}\nv_lshlrev_b32 v{F0+1}, 3, v{F0+1}")
    def f_desc(): a(f"ds_read_b64 {v2(F0+1)}, v{F0+1} offset:{L_AB}")
    def f_load():
        a(f"""
        v_bfe_u32 v{F0}, v{F0}, 8, 22
        v_and_b32 v{RP}, 0xfffff, v{F0+1}
        v_add_u32 v{F0}, s{S_JB}, v{F0}
        v_add_u32 v{RP}, v{RP}, v{F0}
        buffer_load_dwordx4 {v4(RB)}, {v2(RP)}, s[{S_REC}:{S_REC+3}], 0 idxen offen {recpol}
        buffer_load_dwordx4 {v4(RB+4)}, {v2(RP)}, s[{S_REC}:{S_REC+3}], 0 idxen offen offset:16 {recpol}
        """)
    def f_mask():
        a(f"""
        v_mul_u32_u24 v{F0}, {RPL}, v{F0}
        v_lshrrev_b32 v{F0+1}, 20, v{F0+1}
        v_and_b32 v{F0+2}, 0xffff, v{F0+2}
        v_sub_u32 v{F0+1}, v{F0+1}, v{F0}
        v_sub_u32 v{F0+2}, v{F0+2}, v{F0}
        v_max_i32 v{F0+1}, 0, v{F0+1}
        v_med3_i32 v{F0+2}, v{F0+2}, 0, {RPL}
        v_bfm_b32 v{F0+1}, v{F0+1}, 0
        v_bfm_b32 v{F0+2}, v{F0+2}, 0
        v_bfi_b32 v{F0+1}, v{F0+2}, v{F0+1}, -1
        v_lshrrev_b32 v{INV}, v{VQ}, v{F0+1}
        """)
    RAWPK = [RB, RB + 2, RB + 4, RB + 6, RB + 3]
    def decode(i):
        a(f"v_bfe_i32 v{PK+i}, v{INV}, {4*i}, 1\nv_or_b32 v{PK+i}, v{PK+i}, v{RAWPK[i]}")
        src = [RB + 1, RB + 1, RB + 5, RB + 5, RB + 7][i]
        if i in (0, 2): a(f"v_lshlrev_b32 v{AN+i}, 16, v{src}")
        else: a(f"v_and_b32 v{AN+i}, 0xffff0000, v{src}")
    def gathers(n):
        a(f"""
        v_lshrrev_b32 v{IX[0]}, 12, v{PK+n}
        v_lshrrev_b32 v{IX[1]}, 12, v{PK+n}
        v_and_b32 v{PK+n}, 0xfff, v{PK+n}
        v_mul_u32_u24 v{PK+n}, 48, v{PK+n}
        v_permlane32_swap_b32 v{IX[0]}, v{IX[1]}
        buffer_load_dwordx4 {v4(GA)}, {v2(IX[0])}, s[{S_M}:{S_M+3}], 0 idxen offen {gpol}
        buffer_load_dwordx4 {v4(GA+4)}, {v2(IX[1])}, s[{S_M}:{S_M+3}], 0 idxen offen {gpol}
        """)
    def cosines(n):
        a(f"""
        v_mul_f32 v{C0+2}, 0x40400000, v{AN+n}
        v_mul_f32 v{C0}, 0.15915494, v{AN+n}
        v_cvt_pk_bf16_f32 v{C0+2}, 0, v{C0+2}
        v_add_f32 v{C0+1}, v{C0}, v{C0}
        v_cos_f32 v{C0}, v{C0}
        v_mul_f32 v{C0+2}, 0.15915494, v{C0+2}
        v_cos_f32 v{C0+1}, v{C0+1}
        v_cos_f32 v{C0+2}, v{C0+2}
        v_cvt_pk_f16_f32 v{C0+3}, v{C0}, v{C0+1}
        v_cvt_pk_f16_f32 v{C0+4}, v{C0+2}, v{C0+2}
        """)
    def basis():
        for l in range(3):
            sel = ["op_sel:[0,0] op_sel_hi:[1,0]", "op_sel:[0,1] op_sel_hi:[1,1]", "op_sel:[0,0] op_sel_hi:[1,0]"][l]
            c = C0 + 3 if l < 2 else C0 + 4
            for j in range(4): a(f"v_pk_mul_f16 v{SB+4*l+j}, v{RF+j}, v{c} {sel}")
            if l == 1: a(f"v_mfma_f32_32x32x16_f16 {v16(DG)}, {v4(WG[0])}, {v4(SB)}, 0")
            if l == 2: a(f"v_mfma_f32_32x32x16_f16 {v16(DG)}, {v4(WG[1])}, {v4(SB+4)}, {v16(DG)}")
        a(f"s_nop 0\nv_mfma_f32_32x32x16_f16 {v16(DG)}, {v4(WG[2])}, {v4(SB+8)}, {v16(DG)}")
    def rmw_half(hf, adr, pend):
        for j in range(4 * hf, 4 * hf + 4):
            src = LK if j == 0 else AC + j
            t = TT + 2 * (j & 1)
            a(f"v_lshlrev_b32 v{t}, 16, v{src}\nv_and_b32 v{t+1}, 0xffff0000, v{src}")
            if pend: a(f"v_pk_add_f32 {v2(t)}, {v2(PE+2*j)}, {v2(t)}")
            else: a(f"v_pk_fma_f32 {v2(t)}, {v2(DM+2*j)}, {v2(DG+2*j)}, {v2(t)}")
            a(f"v_cvt_pk_bf16_f32 v{AC+j}, v{t}, v{t+1}")
        a(f"ds_write_b128 v{adr}, {v4(AC+4*hf)} offset:{L_ROW+16*hf}")
    def lock(adr):
        a(f"""
        ds_wrxchg_rtn_b32 v{LK}, v{adr}, v{SE} offset:{L_ROW}
        ds_read_b128 {v4(AC+4)}, v{adr} offset:{L_ROW+16}
        ds_read_b128 {v4(AC)}, v{adr} offset:{L_ROW}
        """)
    f_entry_pre(); f_entry(); a("s_waitcnt lgkmcnt(0)")
    f_desc_pre(); f_desc(); a("s_waitcnt lgkmcnt(0)")
    f_load(); f_mask()
    a(f"""
    s_cmp_lg_u32 s{S_ROUND}, 0
    s_cbranch_scc1 B_rbf_done
    v_mul_u32_u24 v3, 48, v0
    v_mov_b32 v2, 0x41600000
    s_waitcnt vmcnt(2)
    """)
    for k in range(NR):
        if k == NR - 1:
            a(f"s_cmp_ge_u32 s{S_WAVE}, {-(-(EB - k*NTH)//64)}\ns_cbranch_scc1 B_rbf_done")
        if k: a(f"v_add_u32 v3, {48*NTH}, v3")
        a(f"v_lshlrev_b32 v{PE+k}, 16, v{PE+k}")
        for r in range(8): a(f"v_subrev_f32 v{DM+r}, s{S_CEN+r}, v{PE+k}")
        for r in range(8): a(f"v_cvt_pk_bf16_f32 v{DM+r}, 0, v{DM+r}")
        for r in range(8): a(f"v_mul_f32 v{DM+r}, v{DM+r}, v{DM+r}")
        for r in range(8): a(f"v_cvt_pk_bf16_f32 v{DM+r}, 0, v{DM+r}")
        for r in range(8): a(f"v_mul_f32 v{DM+r}, 0xc1200000, v{DM+r}")
        for r in range(8): a(f"v_cvt_pk_bf16_f32 v{DM+r}, 0, v{DM+r}")
        for r in range(8): a(f"v_fmamk_f32 v{DM+r}, v{DM+r}, 0x3fb8aa3b, v2")
        for r in range(8): a(f"v_exp_f32 v{DM+r}, v{DM+r}")
        for r in range(8): a(f"v_cvt_pk_bf16_f32 v{DM+r}, 0, v{DM+r}")
        for j in range(4): a(f"v_cvt_pk_f16_f32 v{DG+j}, v{DM+2*j}, v{DM+2*j+1}")
        a(f"ds_write_b128 v3, {v4(DG)} offset:{L_ROW+32}")
    a("B_rbf_done:\ns_waitcnt vmcnt(0)")
    for i in range(4): decode(i)
    gathers(0); cosines(0)
    a(f"s_waitcnt lgkmcnt(0)\ns_barrier")
    stamp()
    a(f"ds_read_b128 {v4(RF)}, v{PK} offset:{L_ROW+32}\ns_waitcnt lgkmcnt(0)")
    basis()
    a(f"s_cmp_ge_u32 s{S_TK}, s{S_NCH}\ns_cbranch_scc1 B_loop_done")
    a("B_loop:")
    for b in range(5):
        n = (b + 1) % 5
        a("s_waitcnt vmcnt(0)")
        if not memonly:
            a(f"v_mfma_f32_32x32x16_bf16 {v16(DM)}, {v4(WD[0])}, {v4(GA)}, 0")
            a(f"v_mfma_f32_32x32x16_bf16 {v16(DM)}, {v4(WD[1])}, {v4(GA+4)}, {v16(DM)}")
        if b == 4: decode(0)
        if b == 3: f_load()
        gathers(n)
        if b == 1: f_entry_pre()
        if b == 2: f_desc_pre()
        if memonly:
            if b == 0: f_ticket(); decode(4)
            if b == 1: f_entry()
            if b == 2: f_desc()
            if b == 3: f_mask()
            if b == 4: decode(1); decode(2); decode(3)
            a("s_waitcnt lgkmcnt(0)")
            continue
        if prio: a("s_setprio 2")
        lock(PK + b)
        a(f"ds_read_b128 {v4(RF)}, v{PK+n} offset:{L_ROW+32}")
        nf = 1
        if b == 0: f_ticket(); nf = 2
        if b == 1: f_entry(); nf = 2
        if b == 2: f_desc(); nf = 2
        cosines(n)
        a(f"""
        s_waitcnt lgkmcnt({nf})
        v_cmp_ne_u32 vcc, v{LK}, v{SE}
        s_mov_b64 exec, vcc
        """)
        rmw_half(1, PK + b, False); rmw_half(0, PK + b, False)
        if prio: a("s_setprio 0")
        a(f"""
        s_not_b64 {S_LM_}, vcc
        s_cbranch_scc0 B_nolose{b}
        s_and_b64 {S_SAVE_}, {S_LM_}, {S_PM_}
        s_cbranch_scc0 B_stash{b}
        s_swappc_b64 {S_RET_}, {S_DRN_}
        B_stash{b}:
        s_mov_b64 exec, {S_LM_}
        s_or_b64 {S_PM_}, {S_PM_}, {S_LM_}
        """)
        if stamps: a(f"s_bcnt1_i32_b64 s{S_T0}, {S_LM_}\ns_add_u32 s{S_FAST}, s{S_FAST}, s{S_T0}")
        for j in range(8): a(f"v_pk_mul_f32 {v2(PE+2*j)}, {v2(DM+2*j)}, {v2(DG+2*j)}")
        a(f"v_mov_b32 v{PA}, v{PK+b}\nB_nolose{b}:\ns_mov_b64 exec, -1")
        if b == 0: decode(4)
        if b == 3: f_mask()
        if b == 4: decode(1); decode(2); decode(3)
        a("s_waitcnt lgkmcnt(2)")
        basis()
    a(f"""
    s_cmp_lt_u32 s{S_TK}, s{S_NCH}
    s_cbranch_scc1 B_loop
    B_loop_done:
    s_mov_b64 {S_LM_}, -1
    s_cmp_eq_u64 {S_PM_}, 0
    s_cbranch_scc1 B_nopend
    s_swappc_b64 {S_RET_}, {S_DRN_}
    s_mov_b64 exec, -1
    B_nopend:
    s_waitcnt vmcnt(0) lgkmcnt(0)
    """)
    stamp()
    a(f"""
    s_barrier
    s_add_u32 s{S_ROUND}, s{S_ROUND}, 1
    s_cmp_lt_u32 s{S_ROUND}, s{S_NR}
    s_cbranch_scc1 B_round
    """)
    stamp()
    NB = -(-EB // 64); NE = -(-NB // NW)
    MR = 24
    a(f"v_lshlrev_b32 v2, 4, v{LANE}\ns_mov_b32 s{S_T0}, 4096")
    for k in range(3): a(f"buffer_load_dwordx4 {v4(4+4*k)}, v2, s[{S_X}:{S_X+3}], s{S_T0} offen offset:{1024*(k+1)}")
    a(f"s_mul_i32 s{S_T1}, s2, {EB*32}")
    srd(a, S_M, P_M, P_M + 1, f"s{S_T1}", EB * 32)
    srd(a, S_Y, P_OUT, P_OUT + 1, f"s{S_T1}", EB * 32)
    a(f"""
    v_and_b32 v2, 31, v{LANE}
    v_lshrrev_b32 v3, 5, v{LANE}
    v_lshlrev_b32 v2, 5, v2
    v_lshl_add_u32 v2, v3, 4, v2
    s_lshl_b32 s{S_T0}, s{S_WAVE}, 11
    v_add_u32 v2, s{S_T0}, v2
    v_mul_u32_u24 v3, 48, v0
    """)
    for k in range(NE):
        a(f"s_mov_b32 s{S_T0}, {k*NTH*32}")
        a(f"buffer_load_dwordx4 {v4(MR+8*k)}, v2, s[{S_M}:{S_M+3}], s{S_T0} offen")
        a(f"buffer_load_dwordx4 {v4(MR+8*k+4)}, v2, s[{S_M}:{S_M+3}], s{S_T0} offen offset:1024")
    assert MR + 8 * NE <= DM
    for k in range(NE):
        if k == NE - 1:
            a(f"s_cmp_ge_u32 s{S_WAVE}, {NB - k*NW}\ns_cbranch_scc1 B_epi_done")
        if k: a(f"v_add_u32 v3, {48*NTH}, v3")
        a(f"""
        ds_read_b128 {v4(AC)}, v3 offset:{L_ROW}
        ds_read_b128 {v4(AC+4)}, v3 offset:{L_ROW+16}
        ds_read_b128 {v4(RF)}, v3 offset:{L_ROW+32}
        s_waitcnt vmcnt({2*(NE-1-k) + 2*k}) lgkmcnt(0)
        v_mfma_f32_32x32x16_bf16 {v16(DM)}, {v4(4)}, {v4(AC)}, 0
        v_mfma_f32_32x32x16_bf16 {v16(DM)}, {v4(8)}, {v4(AC+4)}, {v16(DM)}
        v_mfma_f32_32x32x16_f16 {v16(DG)}, {v4(12)}, {v4(RF)}, 0
        """)
        for j in range(8):
            a(f"v_lshlrev_b32 v{PE+2*j}, 16, v{MR+8*k+j}\nv_and_b32 v{PE+2*j+1}, 0xffff0000, v{MR+8*k+j}")
        for j in range(8):
            a(f"v_pk_fma_f32 {v2(PE+2*j)}, {v2(DM+2*j)}, {v2(DG+2*j)}, {v2(PE+2*j)}")
        for j in range(8):
            a(f"v_cvt_pk_bf16_f32 v{MR+8*k+j}, v{PE+2*j}, v{PE+2*j+1}")
        a(f"""
        s_mov_b32 s{S_T0}, {k*NTH*32}
        buffer_store_dwordx4 {v4(MR+8*k)}, v2, s[{S_Y}:{S_Y+3}], s{S_T0} offen {outpol}
        buffer_store_dwordx4 {v4(MR+8*k+4)}, v2, s[{S_Y}:{S_Y+3}], s{S_T0} offen offset:1024 {outpol}
        """)
    a("B_epi_done:")
    if stamps:
        a(f"s_waitcnt vmcnt(0)")
        stamp()
        a(f"""
        s_waitcnt lgkmcnt(0)
        s_lshl_b32 s{S_T0}, s2, 10
        s_add_u32 s{S_T0}, s{S_T0}, {WS_STAMP + 524288}
        """)
        srd(a, S_X, P_WS, P_WS + 1, f"s{S_T0}", 1024)
        a(f"s_lshl_b32 s{S_T1}, s{S_WAVE}, 6\nv_mov_b32 v9, s{S_T1}\ns_mov_b64 exec, 1")
        for i in range(nst[0]):
            a(f"v_mov_b32 v8, s{S_ST+2*i}\nbuffer_store_dword v8, v9, s[{S_X}:{S_X+3}], 0 offen offset:{4*i}\ns_nop 1")
        a(f"v_mov_b32 v8, s{S_FAST}\nbuffer_store_dword v8, v9, s[{S_X}:{S_X+3}], 0 offen offset:56\ns_nop 1")
        a(f"v_mov_b32 v8, s{S_ANY}\nbuffer_store_dword v8, v9, s[{S_X}:{S_X+3}], 0 offen offset:60\ns_nop 1")
    a("B_end:\ns_endpgm")
    a(f"B_drain:\ns_mov_b64 exec, {S_PM_}")
    if opt.get("safe"):
        a(f"""
        s_add_u32 s{S_ANY}, s{S_ANY}, 1
        s_cmp_lt_u32 s{S_ANY}, {opt["safe"]}
        s_cbranch_scc1 B_drain1
        s_mov_b64 {S_PM_}, 0
        s_waitcnt lgkmcnt(0)
        s_setpc_b64 {S_RET_}
        B_drain1:
        """)
    lock(PA)
    a(f"""
    s_waitcnt lgkmcnt(0)
    v_cmp_ne_u32 vcc, v{LK}, v{SE}
    s_mov_b64 exec, vcc
    s_andn2_b64 {S_PM_}, {S_PM_}, vcc
    """)
    rmw_half(1, PA, True); rmw_half(0, PA, True)
    a(f"""
    s_and_b64 {S_SAVE_}, {S_LM_}, {S_PM_}
    s_cbranch_scc1 B_drain
    s_setpc_b64 {S_RET_}
    """)
    return head(name) + a.text(), desc(name, NV), nst[0]

HEADER = open("gather_scatter__molecular_angular_gemnet__graph.s.ref").read().split("; Override launch")[0] if __name__ == "__main__" else ""
def full(optA, optB, header=""):
    ba, da, na = gen_part("part_kernel", optA)
    bb, db, nb = gen_main("accum_kernel", optB)
    nth = optB.get("nw", 12) * 64
    s = header + f"; @launch kernel=part_kernel grid=({NT},1,1) block=(1024,1,1) lds={LDS}\n; @launch kernel=accum_kernel grid=({NT},1,1) block=({nth},1,1) lds={LDS}\n"
    s += '.amdgcn_target "amdgcn-amd-amdhsa--gfx950"\n' + ba + bb + da + db
    return s, na, nb
DEF_A = {"ldpol": "nt", "stpol": "sc1", "ang_first": False}
DEF_B = {}
if __name__ == "__main__":
    out = sys.argv[1] if len(sys.argv) > 1 else "gather_scatter__molecular_angular_gemnet__graph.s"
    open(out, "w").write(full(DEF_A, DEF_B, HEADER)[0])
```

```python
import sys

E = 800000; T = 12800000; NT = 256
TILE = T // NT
EB = E // NT
SO_DEF = 3144
RPL = 20
TL = -(-(TILE + NT * (RPL - 1)) // RPL)
TS = TL * 128
TLC = -(-TL // 128) * 128
WS_DESC = NT * TLC * 128
WS_OPS = WS_DESC + NT * NT * 16
WS_EXP = WS_OPS + 2048
WS_STAMP = WS_OPS + 8192 + 256
LDS = 163840
PIVOT = 8

class Asm:
    def __init__(self): self.L = []
    def __call__(self, s):
        for ln in s.strip("\n").split("\n"):
            ln = ln.strip()
            if ln: self.L.append(ln if ln.endswith(":") else "    " + ln)
    def text(self): return "\n".join(self.L) + "\n"

def head(name):
    return f".text\n.globl {name}\n.p2align 8\n.type {name},@function\n{name}:\n"
def desc(name, vgpr, sgpr=102):
    accum = min(256, (vgpr + 3) // 4 * 4)
    return f""".section .rodata,"a"
.p2align 6
.amdhsa_kernel {name}
  .amdhsa_next_free_vgpr {vgpr}
  .amdhsa_next_free_sgpr {sgpr}
  .amdhsa_accum_offset {accum}
  .amdhsa_group_segment_fixed_size 0
  .amdhsa_kernarg_size 112
  .amdhsa_user_sgpr_count 2
  .amdhsa_user_sgpr_kernarg_segment_ptr 1
  .amdhsa_system_sgpr_workgroup_id_x 1
  .amdhsa_float_denorm_mode_32 3
.end_amdhsa_kernel
"""

def srd(a, d, lo, hi, off_s, size):
    a(f"""
    s_add_u32 s{d}, s{lo}, {off_s}
    s_addc_u32 s{d+1}, s{hi}, 0
    s_and_b32 s{d+1}, s{d+1}, 0xffff
    s_mov_b32 s{d+2}, {size}
    s_mov_b32 s{d+3}, 0x20000
    """)

def code_touch(a, pref, d, vt, vd, lo, hi, tid128):
    a(f"""
    s_getpc_b64 s[{d}:{d+1}]
    {pref}_pc0:
    s_add_u32 s{d}, s{d}, {lo}-{pref}_pc0
    s_addc_u32 s{d+1}, s{d+1}, 0
    {tid128}
    v_cmp_gt_u32 vcc, {hi}-{lo}, v{vt}
    s_and_saveexec_b64 s[{d+2}:{d+3}], vcc
    s_cbranch_execz {pref}_touched
    v_mov_b32 v{vt+1}, s{d+1}
    v_add_co_u32 v{vt}, vcc, s{d}, v{vt}
    s_nop 1
    v_addc_co_u32 v{vt+1}, vcc, 0, v{vt+1}, vcc
    global_load_dword v{vd}, v[{vt}:{vt+1}], off
    {pref}_touched:
    s_mov_b64 exec, -1
    """)

def wave_scan(a, v, op="v_add_u32"):
    for m in ("row_shr:1 row_mask:0xf bank_mask:0xf bound_ctrl:1", "row_shr:2 row_mask:0xf bank_mask:0xf bound_ctrl:1",
              "row_shr:4 row_mask:0xf bank_mask:0xf bound_ctrl:1", "row_shr:8 row_mask:0xf bank_mask:0xf bound_ctrl:1",
              "row_bcast:15 row_mask:0xa bank_mask:0xf", "row_bcast:31 row_mask:0xc bank_mask:0xf"):
        a(f"s_nop 1\n{op}_dpp v{v}, v{v}, v{v} {m}")

def operands_load(a, S_WAVE, V):
    a(f"""
    s_cmp_ge_u32 s2, 8
    s_cbranch_scc1 A_ops_done
    s_cmp_lg_u32 s{S_WAVE}, 15
    s_cbranch_scc1 A_ops_done
    s_load_dword s100, s[98:99], 0
    s_mov_b64 s[16:17], s[10:11]
    s_mov_b32 s18, 768
    s_mov_b32 s22, 0
    s_mov_b32 s24, 96
    s_lshl_b32 s25, s2, 5
    s_cmp_lt_u32 s2, 3
    s_cbranch_scc1 A_ops_load
    s_mov_b64 s[16:17], s[12:13]
    s_mov_b32 s18, 512
    s_mov_b32 s22, {E*32}
    s_mov_b32 s24, 32
    s_andn2_b32 s25, 1, s2
    s_lshl_b32 s25, s25, 8
    s_cmp_lt_u32 s2, 5
    s_cbranch_scc1 A_ops_load
    s_mov_b64 s[16:17], s[14:15]
    s_mov_b32 s22, 0
    s_cmp_lt_u32 s2, 7
    s_cbranch_scc1 A_ops_load
    s_mov_b64 s[16:17], s[8:9]
    s_mov_b32 s18, 256
    A_ops_load:
    s_and_b32 s17, s17, 0xffff
    s_mov_b32 s19, 0x20000
    s_mov_b32 s20, s94
    s_and_b32 s21, s95, 0xffff
    s_mov_b32 s23, 0x20000
    v_and_b32 v23, 30, v29
    v_and_b32 v28, 0xfc, v4
    v_bfe_u32 v25, v0, 2, 4
    v_mul_u32_u24 v25, {E*32//16}, v25
    v_and_or_b32 v25, v1, 48, v25
    buffer_load_dword v{V+24}, v28, s[16:19], 0 offen
    buffer_load_dword v{V+25}, v28, s[16:19], 0 offen offset:256
    buffer_load_dword v{V+26}, v28, s[16:19], 0 offen offset:512
    """)
    assert (E * 32 // 16) % 64 == 0
    for j in range(4):
        a(f"s_mov_b32 s26, {j * (E*32//64)}\nbuffer_load_dwordx4 v[{V+8+4*j}:{V+11+4*j}], v25, s[20:23], s26 offen")
    for j in range(8):
        a(f"buffer_load_ushort v{V+j}, v23, s[16:19], s25 offen\ns_add_u32 s25, s25, s24")
    a("A_ops_done:")

def operands_store(a, S_WAVE, V, srd_, t0, t1, t2):
    a(f"""
    s_cmp_ge_u32 s2, 8
    s_cbranch_scc1 A_ops2_done
    s_cmp_lg_u32 s{S_WAVE}, 15
    s_cbranch_scc1 A_ops2_done
    v_mov_b32 v20, 0
    v_mov_b32 v21, 0
    """)
    for j in range(3):
        a(f"v_bfe_u32 v22, v{V+24+j}, 7, 8\nv_bfe_u32 v23, v{V+24+j}, 23, 8\nv_max3_u32 v20, v20, v22, v23")
    for j in range(16):
        a(f"v_bfe_u32 v22, v{V+8+j}, 7, 8\nv_bfe_u32 v23, v{V+8+j}, 23, 8\nv_max3_u32 v21, v21, v22, v23")
    wave_scan(a, 20, "v_max_u32")
    a("v_sub_u32 v21, 0, v21\nv_and_b32 v21, 0xff, v21")
    wave_scan(a, 21, "v_max_u32")
    a(f"""
    v_readlane_b32 s{t0}, v20, 63
    v_readlane_b32 s{t1}, v21, 63
    s_sub_u32 s{t1}, 0, s{t1}
    s_and_b32 s{t1}, s{t1}, 0xff
    s_add_u32 s{t0}, s{t0}, s{t1}
    v_mov_b32 v24, s{t0}
    s_sub_i32 s{t1}, 140, s{t0}
    s_cmp_eq_u32 s2, 1
    s_addc_u32 s{t1}, s{t1}, 0
    s_sub_i32 s{t0}, 226, s{t0}
    s_sub_u32 s{t2}, s2, 3
    s_cmp_lt_u32 s{t2}, 2
    s_cselect_b32 s{t0}, s{t0}, s{t1}
    """)
    for j in range(8):
        a(f"v_lshlrev_b32 v{V+j}, 16, v{V+j}\nv_ldexp_f32 v{V+j}, v{V+j}, s{t0}")
    a("s_cbranch_scc1 A_ops_bf16")
    for j in range(4): a(f"v_cvt_pk_f16_f32 v{20+j}, v{V+2*j}, v{V+2*j+1}")
    a("s_branch A_ops_store\nA_ops_bf16:")
    for j in range(4): a(f"v_cvt_pk_bf16_f32 v{20+j}, v{V+2*j}, v{V+2*j+1}")
    a(f"""
    A_ops_store:
    s_lshl_b32 s{t0}, s2, 8
    s_add_u32 s{t0}, s{t0}, {WS_OPS - WS_DESC}
    s_lshr_b32 s{t1}, s2, 1
    s_lshl_b32 s{t1}, s{t1}, 2
    s_add_u32 s{t1}, s{t1}, {WS_EXP - WS_DESC}
    v_and_b32 v25, 0x3f0, v1
    s_mov_b64 exec, 0xffff
    buffer_store_dwordx4 v[20:23], v25, s[{srd_}:{srd_+3}], s{t0} offen sc1
    s_mov_b64 exec, -1
    s_bitcmp0_b32 s2, 0
    s_cbranch_scc1 A_ops2_done
    s_mov_b64 exec, 1
    buffer_store_dword v24, v25, s[{srd_}:{srd_+3}], s{t1} offen sc1
    s_mov_b64 exec, -1
    A_ops2_done:
    """)

def gen_part(name, opt):
    a = Asm()
    stamps = opt.get("stamps", False)
    ldpol = opt.get("ldpol", ""); stpol = opt.get("stpol", ""); angpol = opt.get("angpol", ldpol)
    SO = opt.get("so", SO_DEF)
    ILV = opt.get("ilv", 0)
    HS = opt.get("hs", 36)
    WIN = opt.get("win", 2)
    AWIN = opt.get("awin", 4)
    HOLD = opt.get("hold", 6)
    NG = 12
    NL = TILE - NG * 4096
    R0 = 30
    R = lambda g, j: R0 + 8 * g + j
    RL = R0 + 8 * NG
    S_IN, S_OUT, S_ANG, S_REC, S_DSC = 8, 12, 16, 20, 24
    S_G16 = 32
    S_G8 = 48
    S_LAST = 62
    S_WAVE = 64; S_DIV = 65; S_NEG = 66; S_HI = 67; S_LO = 68; S_T0 = 69; S_T1 = 70; S_NB = 71
    S_HP = 45; S_TOT = 46; S_XCC = 47
    S_ST = 72
    LAST = f"s[{S_LAST}:{S_LAST+1}]"
    nst = [0]
    def stamp():
        if stamps and nst[0] < 11:
            a(f"s_memrealtime s[{S_ST+2*nst[0]}:{S_ST+2*nst[0]+1}]"); nst[0] += 1
    a(f"""
    s_cmp_ge_u32 s2, {NT}
    s_cbranch_scc1 {"B_end" if opt.get("fused") else "A_end"}
    s_load_dwordx4 s[4:7], s[0:1], 8
    s_load_dwordx2 s[28:29], s[0:1], 32
    s_load_dwordx2 s[30:31], s[0:1], 104
    s_load_dwordx2 s[94:95], s[0:1], 0
    s_load_dwordx2 s[96:97], s[0:1], 24
    s_load_dwordx8 s[8:15], s[0:1], 56
    s_load_dwordx2 s[98:99], s[0:1], 40
    """)
    stamp()
    if opt.get("touch") in (1, 2): code_touch(a, "A", S_REC, 6, 6, "A_pc0", "B_codeend" if opt["touch"] == 2 else "A_end", "v_lshlrev_b32 v6, 7, v0")
    for g in range(NG + 1):
        if ILV and g == NG:
            a(f"s_mul_i32 s{S_G8+g}, s2, {2*NL - 8192}\ns_add_u32 s{S_G8+g}, s{S_G8+g}, {g*8192*NT}\ns_lshl_b32 s{S_G16+g}, s{S_G8+g}, 1")
        else:
            a(f"s_mov_b32 s{S_G16+g}, {g*16384*(NT if ILV else 1)}\ns_mov_b32 s{S_G8+g}, {g*8192*(NT if ILV else 1)}")
    a(f"""
    v_lshlrev_b32 v1, 4, v0
    v_lshlrev_b32 v2, 3, v0
    v_lshlrev_b32 v3, 5, v0
    v_lshrrev_b32 v4, 2, v0
    v_mad_u32_u24 v3, v4, {4*HS - 128}, v3
    v_lshrrev_b32 v4, 6, v0
    v_cmp_gt_u32 vcc, {NL}, v0
    s_mov_b64 {LAST}, vcc
    v_readfirstlane_b32 s{S_WAVE}, v4
    s_mov_b32 s{S_DIV}, {(2**32 + 2*EB - 1)//(2*EB)}
    s_mov_b32 s{S_NEG}, {-2*EB}
    s_mov_b32 s{S_HI}, 0xffff0000
    s_mov_b32 s{S_LO}, 0xffff
    s_getreg_b32 s{S_XCC}, hwreg(HW_REG_XCC_ID, 0, 4)
    s_mul_i32 s{S_T0}, s2, {16384 if ILV else TILE*4}
    s_mul_i32 s{S_T1}, s2, {8192 if ILV else TILE*2}
    s_add_u32 s{S_TOT}, s{S_G16+NG}, {4*NL}
    s_add_u32 s{S_NB}, s{S_G8+NG}, {2*NL}
    v_lshlrev_b32 v4, 2, v0
    v_lshlrev_b32 v29, 1, v0
    s_waitcnt lgkmcnt(0)
    """)
    if opt.get("pst"): stamp()
    operands_load(a, S_WAVE, R(8, 0))
    srd(a, S_IN, 4, 5, f"s{S_T0}", f"s{S_TOT}")
    srd(a, S_OUT, 6, 7, f"s{S_T0}", f"s{S_TOT}")
    stream = [("il",), ("ol",)]
    for g in range(NG): stream += [("i", g), ("o", g)]
    NIDX = len(stream)
    stream += [("al",)] + [("a", g) for g in range(NG)]
    issued = [0]
    def issue():
        x = stream[issued[0]]; issued[0] += 1
        if x[0] == "il": a(f"buffer_load_dword v{RL}, v4, s[{S_IN}:{S_IN+3}], s{S_G16+NG} offen {ldpol}")
        if x[0] == "ol": a(f"buffer_load_dword v{RL+1}, v4, s[{S_OUT}:{S_OUT+3}], s{S_G16+NG} offen {ldpol}")
        if x[0] == "i": a(f"buffer_load_dwordx4 v[{R(x[1],0)}:{R(x[1],3)}], v1, s[{S_IN}:{S_IN+3}], s{S_G16+x[1]} offen {ldpol}")
        if x[0] == "o": a(f"buffer_load_dwordx4 v[{R(x[1],4)}:{R(x[1],7)}], v1, s[{S_OUT}:{S_OUT+3}], s{S_G16+x[1]} offen {ldpol}")
        if x[0] == "al": a(f"buffer_load_ushort v28, v29, s[{S_ANG}:{S_ANG+3}], s{S_G8+NG} offen {angpol}")
        if x[0] == "a": a(f"buffer_load_dwordx2 v[{R(x[1],6)}:{R(x[1],7)}], v2, s[{S_ANG}:{S_ANG+3}], s{S_G8+x[1]} offen {angpol}")
    extra = [0]
    stores_after = []
    def wait_for(pos, lg=None):
        n = issued[0] - 1 - pos + sum(1 for p in stores_after if p > pos)
        a(f"s_waitcnt vmcnt({n})" + (f" lgkmcnt({lg})" if lg is not None else ""))
    for _ in range(min(NIDX, WIN + 2)): issue()
    srd(a, S_ANG, 28, 29, f"s{S_T1}", f"s{S_NB}")
    OLV = opt.get("olv", 0)
    a(f"s_mul_i32 s{S_T0}, s2, {16384 if OLV else TS}")
    srd(a, S_REC, 30, 31, f"s{S_T0}", TS)
    srd(a, S_DSC, 30, 31, WS_DESC, WS_EXP + 16 - WS_DESC)
    a(f"""
    s_mul_i32 s{S_T0}, s2, 10923
    s_lshr_b32 s{S_T0}, s{S_T0}, 16
    s_mul_i32 s{S_T0}, s{S_T0}, 6
    s_sub_u32 s{S_HP}, s2, s{S_T0}
    """)
    a("""
    v_mov_b32 v8, 0
    v_mov_b32 v9, 0
    v_mov_b32 v10, 0
    v_mov_b32 v11, 0
    v_mov_b32 v5, 1
    ds_write_b128 v3, v[8:11]
    ds_write_b128 v3, v[8:11] offset:16
    s_waitcnt lgkmcnt(0)
    s_barrier
    """)
    if opt.get("pst"): stamp()
    wait_for(1)
    if opt.get("pst"): stamp()
    a(f"""
    v_mul_hi_u32 v8, v{RL+1}, s{S_DIV}
    v_mad_i32_i24 v{RL+1}, v8, s{S_NEG}, v{RL+1}
    v_subrev_u32 v9, {SO}, v{RL+1}
    v_alignbit_b32 v8, v8, v9, 31
    v_min_u32 v{RL+1}, v{RL+1}, v9
    v_lshl_or_b32 v{RL}, v{RL+1}, 20, v{RL}
    v_bfe_u32 v9, v{RL}, 15, 5
    v_mad_u32_u24 v8, v8, {HS}, v9
    v_lshlrev_b32 v{RL+1}, 2, v8
    s_mov_b64 exec, {LAST}
    ds_add_u32 v{RL+1}, v5
    s_mov_b64 exec, -1
    """)
    done = [-1]
    def top_up(pos):
        while issued[0] < len(stream):
            x = stream[issued[0]]
            infl = sum(2 if stream[k][0] in "io" else 1 for k in range(pos + 1, issued[0]))
            if x[0] in ("i", "o"):
                if infl + 2 > 2 * WIN: break
            else:
                if infl + 1 > AWIN: break
                if x[0] == "a" and x[1] > done[0]: break
            issue()
    for g in range(NG):
        r = [R(g, j) for j in range(8)]
        pat = opt.get("pat", "")
        c = pat[g % len(pat)] if pat else "n"
        shape = opt.get("shape")
        def strict():
            if shape is None: a("s_waitcnt vmcnt(0)")
            else:
                lab = f"A_sh{len(a.L)}"
                a(f"s_bitcmp{1-shape}_b32 s{S_XCC}, 0\ns_cbranch_scc1 {lab}\ns_waitcnt vmcnt(0)\n{lab}:")
        if issued[0] < len(stream) and WIN < 20:
            wait_for(2 + 2 * g)
            if c in "ps" and g < NG - 1: strict()
            top_up(2 + 2 * g)
        wait_for(3 + 2 * g)
        if c == "s" and g < NG - 1: strict()
        top_up(3 + 2 * g)
        t = 8 + 4 * (g & 1)
        for j in range(4): a(f"v_mul_hi_u32 v{t+j}, v{r[4+j]}, s{S_DIV}")
        for j in range(4): a(f"v_mad_i32_i24 v{r[4+j]}, v{t+j}, s{S_NEG}, v{r[4+j]}")
        for j in range(4): a(f"v_subrev_u32 v{16+j}, {SO}, v{r[4+j]}")
        for j in range(4): a(f"v_alignbit_b32 v{t+j}, v{t+j}, v{16+j}, 31")
        for j in range(4): a(f"v_min_u32 v{r[4+j]}, v{r[4+j]}, v{16+j}")
        a(f"""
        v_lshl_or_b32 v{r[0]}, v{r[4]}, 20, v{r[0]}
        v_lshl_or_b32 v{r[4]}, v{r[6]}, 20, v{r[2]}
        v_lshl_or_b32 v{r[2]}, v{r[5]}, 20, v{r[1]}
        v_lshl_or_b32 v{r[5]}, v{r[7]}, 20, v{r[3]}
        """)
        done[0] = g
        pk = [r[0], r[2], r[4], r[5]]
        for j in range(4): a(f"v_bfe_u32 v{16+j}, v{pk[j]}, 15, 5")
        for j in range(4): a(f"v_mad_u32_u24 v{t+j}, v{t+j}, {HS}, v{16+j}")
        for j in range(4): a(f"v_lshlrev_b32 v{t+j}, 2, v{t+j}\nds_add_u32 v{t+j}, v5")
        a(f"v_lshl_or_b32 v{r[1]}, v{t+1}, 16, v{t}\nv_lshl_or_b32 v{r[3]}, v{t+3}, 16, v{t+2}")
        if g == 0:
            assert WIN <= 4
            operands_store(a, S_WAVE, R(8, 0), S_DSC, S_T0, S_T1, S_NB)
    a("s_waitcnt lgkmcnt(0)\ns_barrier")
    stamp()
    KS = opt.get("ks", (0, 0, 0))
    def more(n):
        for _ in range(n):
            if issued[0] < len(stream): issue()
    a(f"""
    ds_read_b128 v[8:11], v3
    ds_read_b128 v[12:15], v3 offset:16
    """)
    more(KS[0])
    a(f"""
    v_and_b32 v6, 3, v0
    s_lshl_b32 s{S_T0}, s{S_WAVE}, 2
    s_add_u32 s{S_T0}, s{S_T0}, 40960
    v_mov_b32 v19, s{S_T0}
    v_and_b32 v17, 15, v0
    v_lshlrev_b32 v17, 2, v17
    s_waitcnt lgkmcnt(0)
    v_add_u32 v9, v8, v9
    v_add_u32 v10, v9, v10
    v_add_u32 v11, v10, v11
    v_add_u32 v12, v11, v12
    v_add_u32 v13, v12, v13
    v_add_u32 v14, v13, v14
    v_add_u32 v15, v14, v15
    s_lshr_b32 s{S_T0}, s{S_HP}, 1
    v_cmp_eq_u32 vcc, s{S_T0}, v6
    v_add_u32_dpp v7, v15, v15 quad_perm:[1,0,3,2] row_mask:0xf bank_mask:0xf
    s_mov_b32 s{S_T1}, 52429
    s_bitcmp1_b32 s{S_HP}, 0
    v_add_u32_dpp v7, v7, v7 quad_perm:[2,3,0,1] row_mask:0xf bank_mask:0xf
    v_add_u32 v20, {RPL-1}, v7
    v_mul_u32_u24 v20, s{S_T1}, v20
    v_lshrrev_b32 v20, 20, v20
    v_mul_u32_u24 v21, {RPL}, v20
    v_sub_u32 v7, v21, v7
    v_cndmask_b32 v21, 0, v7, vcc
    v_lshl_or_b32 v7, v20, 16, v7
    v_mov_b32 v20, v15
    s_cbranch_scc1 A_hole7
    v_mov_b32 v20, v11
    v_add_u32 v11, v11, v21
    v_add_u32 v12, v12, v21
    v_add_u32 v13, v13, v21
    v_add_u32 v14, v14, v21
    A_hole7:
    v_add_u32 v15, v15, v21
    v_mov_b32 v18, v15
    """)
    wave_scan(a, 18)
    a(f"""
    s_mov_b32 exec_lo, 0
    s_brev_b32 exec_hi, 1
    ds_write_b32 v19, v18
    s_mov_b64 exec, -1
    v_sub_u32 v18, v18, v15
    s_waitcnt lgkmcnt(0)
    s_barrier
    ds_read_b32 v19, v17 offset:40960
    """)
    more(KS[1])
    a(f"""
    s_waitcnt lgkmcnt(0)
    v_mov_b32 v17, v19
    """)
    for sh in (1, 2, 4, 8):
        a(f"s_nop 1\nv_add_u32_dpp v17, v17, v17 row_shr:{sh} row_mask:0xf bank_mask:0xf bound_ctrl:1")
    a(f"""
    v_sub_u32 v19, v17, v19
    v_readlane_b32 s{S_TOT}, v17, 15
    v_readlane_b32 s{S_T0}, v19, s{S_WAVE}
    s_nop 1
    """)
    a(f"v_add_u32 v4, s{S_T0}, v18")
    for i in range(7, -1, -1): a(f"v_add_u32 v{9+i}, v4, v{8+i}")
    a(f"""
    v_mov_b32 v8, v4
    ds_write_b128 v3, v[12:15] offset:16
    ds_write_b128 v3, v[8:11]
    v_add_u32 v19, v4, v20
    v_cndmask_b32 v19, 0, v19, vcc
    v_mov_b32 v3, {(RPL - 1 - opt.get('pivot', PIVOT)) * 52429}
    s_mul_i32 s{S_TOT}, s{S_TOT}, 52429
    s_lshr_b32 s{S_TOT}, s{S_TOT}, 20
    s_lshl_b32 s{S_REC+2}, s{S_TOT}, 7
    """)
    if OLV:
        a(f"s_lshr_b32 s{S_NB}, s{S_TOT}, 7\ns_mul_i32 s{S_NB}, s{S_NB}, {16384*(NT-1)}\ns_add_u32 s{S_REC+2}, s{S_REC+2}, s{S_NB}")
    tset = lambda g: [20, 24, 8][g % 3]
    def p2_pre(g):
        r = [R(g, j) for j in range(8)]; t = tset(g)
        a(f"""
        v_and_b32 v{t}, s{S_LO}, v{r[1]}
        v_lshrrev_b32 v{t+1}, 16, v{r[1]}
        v_and_b32 v{t+2}, s{S_LO}, v{r[3]}
        v_lshrrev_b32 v{t+3}, 16, v{r[3]}
        """)
    def p2_ds(g):
        t = tset(g)
        for j in range(4): a(f"ds_add_rtn_u32 v{t+j}, v{t+j}, v5")
    def p2_fin(g):
        r = [R(g, j) for j in range(8)]; t = tset(g)
        a(f"""
        v_lshl_or_b32 v{r[1]}, v{r[6]}, 16, v{t}
        v_and_or_b32 v{r[3]}, v{r[6]}, s{S_HI}, v{t+1}
        v_mov_b32 v{r[6]}, v{r[5]}
        v_lshl_or_b32 v{r[5]}, v{r[7]}, 16, v{t+2}
        v_and_or_b32 v{r[7]}, v{r[7]}, s{S_HI}, v{t+3}
        """)
    p2_pre(0); p2_pre(1)
    a(f"""
    s_waitcnt lgkmcnt(0)
    s_barrier
    """)
    stamp()
    more(opt.get("kpre", 0))
    a(f"""
    s_not_b64 exec, {LAST}
    v_mov_b32 v{RL+1}, 0xffff
    s_mov_b64 exec, {LAST}
    ds_add_rtn_u32 v{RL+1}, v{RL+1}, v5
    s_mov_b64 exec, -1
    """)
    p2_ds(0); p2_ds(1)
    more(KS[2])
    for i in range(9): a(f"v_mad_u32_u24 v{8+i}, v{8+i}, s{S_T1}, v3\nv_lshrrev_b32 v{8+i}, 20, v{8+i}")
    for i in range(7, -1, -1): a(f"v_sub_u32 v{9+i}, v{9+i}, v{8+i}")
    for i in range(8): a(f"v_min_u32 v{9+i}, 2, v{9+i}\nv_bfm_b32 v{9+i}, v{9+i}, {i}")
    a(f"""
    v_or3_b32 v18, v9, v10, v11
    v_or3_b32 v18, v18, v12, v13
    v_or3_b32 v18, v18, v14, v15
    v_or_b32 v18, v18, v16
    v_lshlrev_b32 v6, 3, v6
    v_lshlrev_b32 v18, v6, v18
    s_mul_i32 s{S_T0}, s2, {4096 if OLV else TL}
    v_or_b32_dpp v19, v19, v19 quad_perm:[1,0,3,2] row_mask:0xf bank_mask:0xf
    v_or_b32_dpp v18, v18, v18 quad_perm:[1,0,3,2] row_mask:0xf bank_mask:0xf
    v_add_u32 v16, s{S_T0}, v8
    v_or_b32_dpp v19, v19, v19 quad_perm:[2,3,0,1] row_mask:0xf bank_mask:0xf
    v_or_b32_dpp v18, v18, v18 quad_perm:[2,3,0,1] row_mask:0xf bank_mask:0xf
    v_and_b32 v12, 31, v7
    v_lshl_or_b32 v16, v12, 20, v16
    v_sub_u32 v19, v19, v4
    v_and_or_b32 v17, v7, s{S_HI}, v19
    v_lshrrev_b32 v12, 16, v7
    v_bcnt_u32_b32 v13, v18, 0
    v_sub_u32 v12, v12, v13
    v_min_u32 v12, 6, v12
    v_bfm_b32 v12, v12, 26
    v_or_b32 v18, v18, v12
    """)
    APOS = NIDX + 1; JIT = opt.get('jit', 0)
    for g in range(NG):
        if g + 2 < NG:
            p2_pre(g + 2); p2_ds(g + 2); n = 8
        else:
            n = 4 * (NG - 1 - g)
        if JIT:
            more(opt.get("kg", 1))
            a(f"s_waitcnt lgkmcnt({n})")
            r = [R(g, j) for j in range(8)]; t = tset(g)
            a(f"v_lshl_or_b32 v{r[1]}, v{t+1}, 16, v{t}\nv_lshl_or_b32 v{r[3]}, v{t+3}, 16, v{t+2}")
            continue
        while issued[0] <= APOS + g: issue()
        if "ks" in opt: more(opt.get("kg", 1)); wait_for(APOS + g, n)
        else: wait_for(APOS + g, n); top_up(APOS + g)
        if g == 0: a(f"v_lshl_or_b32 v{RL+1}, v28, 16, v{RL+1}")
        p2_fin(g)
    def merge(g):
        r = [R(g, j) for j in range(8)]
        wait_for(APOS + g)
        a(f"""
        v_perm_b32 v8, v{r[6]}, v{r[1]}, s{S_DIV}
        v_perm_b32 v{r[1]}, v{r[6]}, v{r[1]}, s{S_NEG}
        v_mov_b32 v{r[6]}, v{r[5]}
        v_perm_b32 v{r[5]}, v{r[7]}, v{r[3]}, s{S_NEG}
        v_perm_b32 v{r[7]}, v{r[7]}, v{r[3]}, s{S_DIV}
        v_mov_b32 v{r[3]}, v8
        """)
    assert issued[0] == len(stream)
    a(f"""
    v_and_b32 v15, 0x300, v0
    v_bfe_u32 v14, v0, 2, 1
    v_lshl_or_b32 v15, v14, 7, v15
    v_bfe_u32 v14, v0, 3, 5
    v_lshl_or_b32 v15, v14, 2, v15
    v_lshlrev_b32 v15, 2, v15
    s_lshl_b32 s{S_T0}, s2, 12
    s_mov_b32 exec_lo, 0x11111111
    s_mov_b32 exec_hi, 0x11111111
    buffer_store_dwordx4 v[16:19], v15, s[{S_DSC}:{S_DSC+3}], s{S_T0} offen {opt.get("dpol", "")}
    s_mov_b64 exec, -1
    """)
    WL = opt.get("warmlines", 0) if opt.get("warm") else 0
    WN = opt.get("warmn", 4)
    WPL = -(-WL // (16 * WN))
    def warm_setup():
        if WL >= 782:
            a(f"s_mul_i32 s{S_T0}, s2, {EB*32}\ns_and_b32 s{S_T0}, s{S_T0}, -128")
            srd(a, S_IN, 94, 95, f"s{S_T0}", EB * 32)
        else:
            a(f"s_mul_i32 s{S_T0}, s2, {WL*128}")
            srd(a, S_IN, 94, 95, f"s{S_T0}", WL * 128)
        if opt.get("warmdist"):
            a(f"s_mul_i32 s{S_T0}, s2, {EB*2}\nv_lshlrev_b32 v7, 7, v0")
            srd(a, S_OUT, 96, 97, f"s{S_T0}", EB * 2)
            a(f"buffer_load_ushort v29, v7, s[{S_OUT}:{S_OUT+3}], 0 offen"); stores_after.append(10**6)
        a(f"""
        v_and_b32 v7, 63, v0
        s_mul_i32 s{S_T0}, s{S_WAVE}, {WPL}
        v_cmp_gt_u32 vcc, {WPL}, v7
        v_add_u32 v7, s{S_T0}, v7
        v_lshlrev_b32 v7, 7, v7
        v_cndmask_b32 v7, -1, v7, vcc
        """)
    def warm(i):
        stores_after.append(10**6)
        a(f"s_mov_b32 s{S_T0}, {i*16*WPL*128}\nbuffer_load_dword v0, v7, s[{S_IN}:{S_IN+3}], s{S_T0} offen {opt.get('warmpol','')}")
    a(f"""
    v_lshrrev_b32 v2, 3, v0
    v_mul_u32_u24 v2, {RPL*8}, v2
    v_bfe_u32 v7, v0, 1, 2
    v_lshl_add_u32 v2, v7, 3, v2
    v_and_b32 v7, 1, v0
    v_lshl_add_u32 v3, v7, 2, v2
    v_lshl_add_u32 v2, v7, 6, v2
    s_mov_b32 s{S_DIV}, 0x07060302
    s_mov_b32 s{S_NEG}, 0x05040100
    """)
    if WL: warm_setup()
    a("s_barrier")
    stamp()
    NPASS = 3
    buf = lambda i: 6 + 4 * (i % 6)
    held = []
    def store(k, i):
        b = buf(i)
        a(f"s_mov_b32 s{S_T0}, {(k*131072 + i*16384) * (NT if OLV else 1)}")
        a(f"buffer_store_dwordx4 v[{b}:{b+3}], v1, s[{S_REC}:{S_REC+3}], s{S_T0} offen {stpol if isinstance(stpol, str) else stpol[k]}")
    abase = [0]
    for k in range(NPASS):
        a(f"s_mov_b32 s{S_NB}, {(-k * LDS) & 0xffffffff}")
        recs = [RL] + [R(g, 2 * j) for g in range(NG) for j in range(4)]
        gap = len(recs) // max(len(held), 1)
        for n_, r in enumerate(recs):
            if held and n_ % gap == 0: store(*held.pop(0))
            w0 = opt.get("warm0", 0); ws_ = (len(recs) - w0) // WN
            if k == 0 and WL and n_ >= w0 and (n_ - w0) % ws_ == 0 and (n_ - w0) // ws_ < WN: warm((n_ - w0) // ws_)
            if k == 0 and JIT:
                if n_ == 0: wait_for(NIDX); a(f"v_lshl_or_b32 v{RL+1}, v28, 16, v{RL+1}")
                if n_ % 4 == 1: merge(n_ // 4)
            t = 4 + n_ % 2
            a(f"v_mad_u32_u16 v{t}, v{r+1}, 8, s{S_NB}\nds_write_b64 v{t}, v[{r}:{r+1}]")
        assert not held
        a(f"s_waitcnt lgkmcnt(0)" + (f" vmcnt({WN})" if k == 0 and WL and opt.get("warmdist") else "") + "\ns_barrier")
        stamp()
        if k == NPASS - 1 and opt.get("touch") == 3: code_touch(a, "A", S_IN, 30, 30, "A_end", "B_codeend", "v_lshlrev_b32 v30, 3, v1")
        nstep = 8 if k < NPASS - 1 else 5
        now = nstep - HOLD if k < NPASS - 1 else nstep
        def rd(i):
            b = buf(i)
            if i % 3 == 0 and i * 20480 != abase[0]:
                d = (i * 20480 - abase[0]) & 0xffffffff
                a(f"v_add_u32 v2, {d}, v2\nv_add_u32 v3, {d}, v3"); abase[0] = i * 20480
            o = (i % 3) * 20480
            a(f"ds_read_b64 v[{b}:{b+1}], v2 offset:{o}\nds_read_b64 v[{b+2}:{b+3}], v2 offset:{o+32}\nds_read_b32 v{4 + i % 2}, v3 offset:{o+128}")
        rd(0)
        for i in range(nstep):
            left = 0
            if i + 1 < nstep: rd(i + 1); left = 1
            b = buf(i)
            a(f"s_waitcnt lgkmcnt({3*left})")
            a(f"v_perm_b32 v{b+1}, v{b+3}, v{b+1}, s{S_DIV}\nv_mov_b32 v{b+3}, v{4 + i % 2}")
            if i < now: store(k, i)
            else: held.append((k, i))
        if k < NPASS - 1:
            a("s_barrier")
        else:
            assert TL <= 2048 + 6 * 128
            a(f"s_cmp_le_u32 s{S_TOT}, {2048 + 5*128}\ns_cbranch_scc1 A_last")
            rd(5); b = buf(5)
            a(f"s_waitcnt lgkmcnt(0)\nv_perm_b32 v{b+1}, v{b+3}, v{b+1}, s{S_DIV}\nv_mov_b32 v{b+3}, v5")
            store(k, 5)
            a("A_last:")
        stamp()
    def warm_end():
        w2 = opt["warm2"]
        par = opt.get("warm2par")
        if par is not None:
            a(f"s_bitcmp{1-par}_b32 s2, 0\ns_cbranch_scc1 A_nowarm2\ns_lshr_b32 s{S_T0}, s2, 1\ns_mul_i32 s{S_T0}, s{S_T0}, {2*w2*128}")
            w2 *= 2
        else:
            a(f"s_mul_i32 s{S_T0}, s2, {w2*128}")
        a(f"s_add_u32 s{S_T0}, s{S_T0}, {WL*NT*128}")
        srd(a, S_IN, 94, 95, 0, E * 32)
        a(f"""
        v_lshlrev_b32 v30, 3, v1
        v_cmp_gt_u32 vcc, {w2*128}, v30
        v_add_u32 v30, s{S_T0}, v30
        s_nop 0
        v_cndmask_b32 v30, -1, v30, vcc
        buffer_load_dword v31, v30, s[{S_IN}:{S_IN+3}], 0 offen
        A_nowarm2:
        """)
    if opt.get("warm2") and not stamps: warm_end()
    if stamps:
        a(f"s_waitcnt vmcnt(0)")
        stamp()
        a(f"""
        s_waitcnt lgkmcnt(0)
        s_lshl_b32 s{S_T0}, s2, 10
        s_add_u32 s{S_T0}, s{S_T0}, {WS_STAMP}
        """)
        srd(a, S_DSC, 30, 31, f"s{S_T0}", 1024)
        a(f"s_lshl_b32 s{S_T1}, s{S_WAVE}, 6\nv_mov_b32 v9, s{S_T1}\ns_mov_b64 exec, 1")
        for i in range(nst[0]):
            a(f"v_mov_b32 v8, s{S_ST+2*i}\nbuffer_store_dword v8, v9, s[{S_DSC}:{S_DSC+3}], 0 offen offset:{4*i}\ns_nop 1")
        a(f"s_getreg_b32 s{S_T0}, hwreg(HW_REG_XCC_ID, 0, 4)\nv_mov_b32 v8, s{S_T0}\nbuffer_store_dword v8, v9, s[{S_DSC}:{S_DSC+3}], 0 offen offset:60")
        if opt.get("warm2"):
            a("s_mov_b64 exec, -1"); warm_end()
    if opt.get("fused"):
        a("s_mov_b64 exec, -1")
        return head(name) + a.text(), "", nst[0]
    a("A_end:\ns_endpgm")
    return head(name) + a.text(), desc(name, 128), nst[0]
```

```python
from gen import *
import re
L_CTR = 0
L_FLAG = 4
L_INFO = 8
L_AB = 16
L_C = L_AB + 2048
L_LIST = L_C + 1024
JMAX = 11; CAP = NT * JMAX
L_OPS = L_LIST + 2 * (CAP + 64)
SENT = 0x7c017c01
RSTEP = 12; RMAX = 24

def gen_main(name, opt):
    a = Asm()
    NW = 16; NTH = NW * 64
    NWK = opt.get("nwk", 12)
    stamps = opt.get("stamps", False)
    recpol = opt.get("recpol", ""); gpol = opt.get("gpol", ""); outpol = opt.get("outpol", "")
    prio = opt.get("prio", True)
    NH = NW - NWK
    SO = opt.get("so", SO_DEF); SMAX = max(SO, 2 * EB - SO)
    L_ROW = LDS - 48 * SMAX
    assert L_ROW >= L_OPS + 2048 + 16 and L_OPS % 16 == 0 and SO % 2 == 0
    S_ROW0, S_NROW = 4, 5
    SPLIT = opt.get("split", 0)
    S_SPL, S_NV, S_CNT = 42, 43, 44
    SPF = opt.get("spf")
    S_M, S_REC, S_X, S_Y = 8, 12, 16, 20
    S_CEN = 24
    S_WAVE, S_NCH, S_TK, S_JB, S_ROUND, S_NR, S_FAST, S_T0, S_T1, S_T2, S_BASE, S_BIT, S_LOW, S_ANY = range(32, 46)
    S_PM, S_LM, S_RET, S_DRN, S_SAVE = 46, 48, 50, 52, 54
    S_PM_, S_LM_, S_RET_, S_DRN_, S_SAVE_ = (f"s[{x}:{x+1}]" for x in (S_PM, S_LM, S_RET, S_DRN, S_SAVE))
    P_M, P_DIST, P_CEN, P_OUT, P_WS = 56, 58, 60, 62, 64
    S_PF, S_TRY = 66, 67
    S_BAD = 86
    S_M20, S_HI = 6, 7
    S_127 = S_CNT; assert not (SPLIT and opt.get('olv'))
    S_CRAW = 68
    S_ST = 72
    S_EV = 100; S_DUM = 94; S_Z = 96
    IM = 1
    WG = [2, 6, 10]; WD = [14, 18]
    IX = 22; RP = 24; RB = 26; PK = 34; AN = 39; INV = 44; F0 = 45
    GA = 48; RF = 56; DM = 60; DG = 76; AC = 92; TT = 100; SB = AC; PE = 104; PA = 120; LK = 121; SE = 122
    C0 = TT; C2 = 123; LANE = 125; T2 = 126; T3 = 127
    NV = 128
    nst = [0]
    def stamp():
        if stamps:
            a(f"s_memrealtime s[{S_ST+2*nst[0]}:{S_ST+2*nst[0]+1}]"); nst[0] += 1
    v4 = lambda r: f"v[{r}:{r+3}]"
    v2 = lambda r: f"v[{r}:{r+1}]"
    v16 = lambda r: f"v[{r}:{r+15}]"

    def f_ticket():
        if SPLIT: a(f"s_cmp_eq_u32 s{S_CNT}, 5\ns_cselect_b64 exec, -1, 0\nds_append v{F0} offset:{L_CTR}\ns_mov_b64 exec, -1")
        else: a(f"ds_append v{F0} offset:{L_CTR}")
    def f_entry_pre():
        a(f"v_readfirstlane_b32 s{S_TK}, v{F0}")
        if SPLIT:
            a(f"""
            s_sub_u32 s{S_T0}, s{S_TK}, s{S_SPL}
            s_cselect_b32 s{S_T0}, 0, s{S_T0}
            s_lshr_b32 s{S_T0}, s{S_T0}, 4
            s_lshr_b32 s{S_T0}, 0x66220000, s{S_T0}
            s_and_b32 s{S_T0}, s{S_T0}, 15
            s_lshl_b32 s{S_T0}, s{S_T0}, 6
            s_sub_u32 s{S_T0}, s{S_TK}, s{S_T0}
            s_cmp_lt_u32 s{S_TK}, s{S_NV}
            s_cselect_b32 s{S_T0}, s{S_T0}, s{S_NCH}
            """)
        else: a(f"s_min_u32 s{S_T0}, s{S_TK}, s{S_NCH}")
        a(f"""
        v_and_or_b32 v{F0}, v0, 60, s{S_T0}
        v_lshrrev_b32 v{F0}, 1, v{F0}
        """)
    def f_entry(): a(f"ds_read_i16 v{F0}, v{F0} offset:{L_LIST}")
    def f_desc_pre(): a(f"v_and_b32 v{F0+1}, 0xff, v{F0}\nv_lshlrev_b32 v{F0+1}, 3, v{F0+1}")
    def f_desc(): a(f"ds_read_b64 {v2(F0+1)}, v{F0+1} offset:{L_AB}")
    def f_load():
        if opt.get("olv"):
            a(f"""
            v_bfe_u32 v{F0}, v{F0}, 8, 16
            v_and_b32 v{RP}, 0xfff, v{F0+1}
            v_add_u32 v{F0}, s{S_JB}, v{F0}
            v_bfe_u32 v{RB}, v{F0+1}, 5, 15
            v_add_u32 v{RP}, v{RP}, v{F0}
            v_lshrrev_b32 v{RB+1}, 7, v{RP}
            v_bfi_b32 v{RP}, s{S_127}, v{RP}, v{RB}
            v_lshl_or_b32 v{RP}, v{RB+1}, 15, v{RP}
            """)
        else:
            a(f"""
            v_bfe_u32 v{F0}, v{F0}, 8, 22
            v_and_b32 v{RP}, 0xfffff, v{F0+1}
            v_add_u32 v{F0}, s{S_JB}, v{F0}
            v_add_u32 v{RP}, v{RP}, v{F0}
            """)
        a(f"""
        buffer_load_dwordx4 {v4(RB)}, {v2(RP)}, s[{S_REC}:{S_REC+3}], 0 idxen offen {recpol}
        buffer_load_dwordx4 {v4(RB+4)}, {v2(RP)}, s[{S_REC}:{S_REC+3}], 0 idxen offen offset:16 {recpol}
        """)
    def f_mask():
        a(f"""
        v_lshrrev_b32 v{INV}, 16, v{F0+2}
        v_and_b32 v{F0+2}, 0xffff, v{F0+2}
        v_lshrrev_b32 v{F0+1}, 20, v{F0+1}
        v_sub_u32 v{INV}, v{F0}, v{INV}
        v_mad_i32_i24 v{F0+2}, v{F0}, s{S_M20}, v{F0+2}
        v_ashrrev_i32 v{INV}, 31, v{INV}
        v_add_u32 v{F0+1}, v{F0+1}, v{F0+2}
        v_med3_i32 v{F0+2}, v{F0+2}, 0, {RPL}
        v_med3_i32 v{F0+1}, v{F0+1}, 0, {RPL}
        v_sub_u32 v{F0+1}, v{F0+1}, v{F0+2}
        v_bfm_b32 v{F0+1}, v{F0+1}, v{F0+2}
        v_and_b32 v{F0}, 3, v0
        v_bfi_b32 v{F0+1}, v{INV}, v{F0+1}, -1
        v_lshrrev_b32 v{INV}, v{F0}, v{F0+1}
        """)
    RAWPK = [RB, RB + 2, RB + 4, RB + 6, RB + 3]
    def decode(i):
        src = [RB + 1, RB + 1, RB + 5, RB + 5, RB + 7][i]
        a(f"v_bfe_i32 v{PK+i}, v{INV}, {4*i}, 1")
        if i in (0, 2): a(f"v_lshlrev_b32 v{AN+i}, 16, v{src}\nv_bfi_b32 v{AN+i}, v{PK+i}, 0, v{AN+i}")
        else: a(f"v_bitop3_b32 v{AN+i}, v{src}, s{S_HI}, v{PK+i} bitop3:0x40")
        a(f"v_or_b32 v{PK+i}, v{PK+i}, v{RAWPK[i]}")
    DPP = "row_mask:0xf bank_mask:0xf"
    def gathers(n, G=GA):
        a(f"""
        v_and_b32_dpp v{IX}, v{PK+n}, v{IM} quad_perm:[0,0,2,2] {DPP}
        buffer_load_dwordx4 {v4(G)}, {v2(IX)}, s[{S_M}:{S_M+3}], 0 idxen offen {gpol}
        v_and_b32_dpp v{IX}, v{PK+n}, v{IM} quad_perm:[1,1,3,3] {DPP}
        buffer_load_dwordx4 {v4(G+4)}, {v2(IX)}, s[{S_M}:{S_M+3}], 0 idxen offen {gpol}
        v_lshrrev_b32 v{PK+n}, 20, v{PK+n}
        v_mul_u32_u24 v{PK+n}, 48, v{PK+n}
        """)
    def own_rows(G=GA):
        a(f"s_mov_b64 vcc, s[{S_EV}:{S_EV+1}]")
        for j in range(4): a(f"v_cndmask_b32_dpp v{AC+j}, v{G+4+j}, v{G+j}, vcc quad_perm:[1,0,3,2] {DPP}")
        a("s_not_b64 vcc, vcc")
        for j in range(4): a(f"v_cndmask_b32_dpp v{AC+4+j}, v{G+j}, v{G+4+j}, vcc quad_perm:[1,0,3,2] {DPP}")
    def down(rows=True):
        if rows: own_rows()
        a(f"v_mfma_f32_32x32x16_bf16 {v16(DM)}, {v4(WD[0])}, {v4(AC)}, 0\ns_nop 0")
        a(f"v_mfma_f32_32x32x16_bf16 {v16(DM)}, {v4(WD[1])}, {v4(AC+4)}, {v16(DM)}")
    def cosines(n):
        a(f"""
        v_mul_f32 v{C0+1}, 0x40400000, v{AN+n}
        v_mul_f32 v{C0}, 0.15915494, v{AN+n}
        v_cvt_pk_bf16_f32 v{C0+1}, 0, v{C0+1}
        v_cos_f32 v{C0}, v{C0}
        v_mul_f32 v{C0+1}, 0.15915494, v{C0+1}
        v_cos_f32 v{C0+1}, v{C0+1}
        v_fma_mixlo_f16 v{C2+1}, v{C0}, v{C0}, -0.5
        v_cvt_pk_f16_f32 v{C2}, v{C0}, v{C0+1}
        """)
    def basis():
        for l in range(3):
            sel = ["op_sel:[0,0] op_sel_hi:[1,0]", "op_sel:[0,0] op_sel_hi:[1,0]", "op_sel:[0,1] op_sel_hi:[1,1]"][l]
            c = C2 + 1 if l == 1 else C2
            for j in range(4): a(f"v_pk_mul_f16 v{SB+4*l+j}, v{RF+j}, v{c} {sel}")
            if l == 1: a(f"v_mfma_f32_32x32x16_f16 {v16(DG)}, {v4(WG[0])}, {v4(SB)}, 0")
            if l == 2: a(f"v_mfma_f32_32x32x16_f16 {v16(DG)}, {v4(WG[1])}, {v4(SB+4)}, {v16(DG)}")
        a(f"s_nop 0\nv_mfma_f32_32x32x16_f16 {v16(DG)}, {v4(WG[2])}, {v4(SB+8)}, {v16(DG)}")
    def rmw_half(hf, adr, pend):
        for j in range(4 * hf, 4 * hf + 4):
            a(f"v_pk_add_f16 v{AC+j}, v{LK if j == 0 else AC+j}, v{(PE if pend else DM) + j}")
        a(f"ds_write_b128 v{adr}, {v4(AC+4*hf)} offset:{L_ROW+16*hf}")
    def lock(adr):
        a(f"""
        ds_wrxchg_rtn_b32 v{LK}, v{adr}, v{SE} offset:{L_ROW}
        ds_read_b128 {v4(AC+4)}, v{adr} offset:{L_ROW+16}
        ds_read_b128 {v4(AC)}, v{adr} offset:{L_ROW}
        """)
    NTW = NWK * 64; NRW = -(-SMAX // NTW)
    assert NRW == 5
    ZR = RF
    def rbf_round(k):
        X = DG; O = DG + 8; K = DG + 12; D = PE + 4; ro = L_ROW + (48 if k in (1, 3) else 0)
        if k == 2: a(f"v_add_u32 v{T3}, {96*NTW}, v{T3}")
        if k == 4: a(f"v_add_u32 v{T3}, {4*NTW}, v0\nv_mul_u32_u24 v{T3}, 48, v{T3}")
        a(f"ds_write_b128 v{T3}, {v4(ZR)} offset:{ro}\nds_write_b128 v{T3}, {v4(ZR)} offset:{ro+16}")
        if k & 1: a(f"v_and_b32 v{D}, 0xffff0000, v{PE+k//2}")
        else: a(f"v_lshlrev_b32 v{D}, 16, v{PE+k//2}")
        for r in range(0, 8, 2): a(f"v_pk_add_f32 {v2(X+r)}, {v2(D)}, s[{S_CEN+r}:{S_CEN+r+1}] op_sel_hi:[0,1] neg_lo:[0,1] neg_hi:[0,1]")
        RN = opt.get("rnd", "")
        def rnd(c):
            if c in RN:
                for r in range(8): a(f"v_cvt_pk_bf16_f32 v{X+r}, 0, v{X+r}")
        rnd("1")
        for r in range(0, 8, 2): a(f"v_pk_mul_f32 {v2(X+r)}, {v2(X+r)}, {v2(X+r)}")
        rnd("2")
        if "3" in RN:
            for r in range(0, 8, 2): a(f"v_pk_mul_f32 {v2(X+r)}, {v2(X+r)}, {v2(K)} op_sel_hi:[1,0]")
        rnd("3")
        for r in range(0, 8, 2): a(f"v_pk_fma_f32 {v2(X+r)}, {v2(X+r)}, {v2(K+2)}, {v2(K+2)} op_sel:[0,0,1] op_sel_hi:[1,0,1]")
        for r in range(8): a(f"v_exp_f32 v{X+r}, v{X+r}")
        rnd("4")
        for j in range(4): a(f"v_cvt_pk_f16_f32 v{O+j}, v{X+2*j}, v{X+2*j+1}")
        a(f"ds_write_b128 v{T3}, {v4(O)} offset:{ro+32}")
    def mrow_loads(ks, base):
        for k in ks:
            a(f"s_mov_b32 s{S_T0}, {k*NTH*32}")
            a(f"buffer_load_dwordx4 {v4(base(k))}, v{MO}, s[{S_Z}:{S_Z+3}], s{S_T0} offen {opt.get('mpol','')}")
            a(f"buffer_load_dwordx4 {v4(base(k)+4)}, v{MO}, s[{S_Z}:{S_Z+3}], s{S_T0} offen offset:1024 {opt.get('mpol','')}")
    mreg = lambda k: 26 + 8 * k
    MO = IM
    def spf(n):
        for rep in range(n):
            a(f"s_buffer_load_dwordx2 s[{S_DUM}:{S_DUM+1}], s[{S_Y}:{S_Y+3}], s{S_PF}\ns_add_u32 s{S_PF}, s{S_PF}, {NH*NT*128}")
        a(f"s_min_u32 s{S_PF}, s{S_PF}, {E*32}")

    a(f"""
    s_cmp_ge_u32 s2, {NT}
    s_cbranch_scc1 B_end
    s_load_dwordx2 s[{P_WS}:{P_WS+1}], s[0:1], 104
    s_load_dwordx2 s[{P_M}:{P_M+1}], s[0:1], 0
    s_load_dwordx2 s[{P_DIST}:{P_DIST+1}], s[0:1], 24
    s_load_dwordx2 s[{P_CEN}:{P_CEN+1}], s[0:1], 40
    s_load_dwordx2 s[{P_OUT}:{P_OUT+1}], s[0:1], 88
    """)
    stamp()
    if opt.get("touch"): code_touch(a, "B", S_M, PA, PA, "B_pc0", "B_codeend", f"v_lshlrev_b32 v{PA}, 7, v0")
    CT = RF
    a(f"""
    s_mov_b32 s3, s2
    s_lshr_b32 s4, s3, 3
    s_and_b32 s2, s3, 7
    s_lshl_b32 s2, s2, 5
    s_or_b32 s2, s2, s4
    s_and_b32 s5, s3, 6
    s_lshl_b32 s5, s5, 4
    s_or_b32 s4, s4, s5
    s_mul_i32 s{S_ROW0}, s4, {2*EB}
    s_movk_i32 s{S_NROW}, {SO}
    s_bitcmp1_b32 s3, 0
    s_cselect_b32 s{S_T0}, 0, s{S_NROW}
    s_cselect_b32 s{S_NROW}, s{S_NROW}, {2*EB - SO}
    s_add_u32 s{S_ROW0}, s{S_ROW0}, s{S_T0}
    s_mov_b32 s{S_TRY}, 0
    B_restart:
    v_lshrrev_b32 v{T2}, 6, v0
    v_lshrrev_b32 v{CT}, 2, v0
    v_readfirstlane_b32 s{S_WAVE}, v{T2}
    v_lshlrev_b32 v{T3}, 12, v{CT}
    v_and_b32 v{LANE}, 63, v0
    s_lshl_b32 s{S_T0}, s2, 4
    s_lshl_b32 s{S_T1}, s{S_ROW0}, 1
    s_lshl_b32 s{S_T2}, s{S_NROW}, 1
    s_mov_b32 m0, 0
    s_mov_b32 s{S_M20}, {-RPL}
    s_mov_b32 s{S_HI}, 0xffff0000
    s_movk_i32 s{S_127}, 127
    v_and_b32 v{T2}, 1, v0
    v_lshlrev_b32 v{IX+1}, 4, v{T2}
    v_mov_b32 v{IM}, 0xfffff
    v_and_b32 v{T2}, 3, v0
    v_lshlrev_b32 v{RP+1}, 5, v{T2}
    v_mov_b32 v{SE}, {SENT}
    v_mov_b32 v{F0}, 0
    v_lshlrev_b32 v{DG+4}, 4, v0
    s_mov_b32 s{S_NCH}, {WS_OPS - WS_DESC}
    v_cmp_gt_u32 vcc, {WS_EXP + 16 - WS_OPS}, v{DG+4}
    s_mov_b64 {S_PM_}, 0
    s_mov_b32 s{S_ROUND}, 0
    s_mov_b32 s{S_EV}, 0x55555555
    s_mov_b32 s{S_EV+1}, 0x55555555
    s_mov_b32 s{S_JB}, 0
    s_getpc_b64 {S_DRN_}
    B_pc:
    s_add_u32 s{S_DRN}, s{S_DRN}, B_drain-B_pc
    s_addc_u32 s{S_DRN+1}, s{S_DRN+1}, 0
    """)
    a("s_waitcnt lgkmcnt(0)")
    if stamps or opt.get("safe"): a(f"s_mov_b32 s{S_ANY}, 0\ns_mov_b32 s73, 0\ns_mov_b32 s{S_FAST}, 0")
    if opt.get("pst"): stamp()
    srd(a, S_X, P_WS, P_WS + 1, WS_DESC, WS_EXP + 16 - WS_DESC)
    assert F0 + 3 == GA
    a(f"""
    s_cmp_ge_u32 s{S_WAVE}, 3
    s_cbranch_scc1 B_noops
    buffer_load_dwordx4 {v4(DG)}, v{DG+4}, s[{S_X}:{S_X+3}], s{S_NCH} offen
    B_noops:
    buffer_load_dwordx3 v[{F0+1}:{F0+3}], v{T3}, s[{S_X}:{S_X+3}], s{S_T0} offen
    """)
    a(f"s_load_dwordx4 s[{S_CRAW}:{S_CRAW+3}], s[{P_CEN}:{P_CEN+1}], 0")
    def op_addr(epi):
        t = C0
        a(f"v_bfe_u32 v{t}, v0, 5, 1\nv_bfe_u32 v{t+1}, v0, {4 if epi else 2}, 1\nv_xor_b32 v{t}, v{t}, v{t+1}\nv_lshlrev_b32 v{t}, 18, v{t}")
        a(f"v_and_b32 v{t+1}, 3, v0\nv_lshl_or_b32 v{t}, v{t+1}, 4, v{t}")
        if epi: a(f"v_bfe_u32 v{t+1}, v0, 3, 1\nv_lshl_or_b32 v{t}, v{t+1}, 6, v{t}\nv_bfe_u32 v{t+1}, v0, 2, 1\nv_lshl_or_b32 v{t}, v{t+1}, 7, v{t}")
        else: a(f"v_bfe_u32 v{t+1}, v0, 3, 2\nv_lshl_or_b32 v{t}, v{t+1}, 6, v{t}")
    a(f"""
    v_lshlrev_b32 v{T2}, 3, v{CT}
    v_lshlrev_b32 v{T3}, 2, v{CT}
    s_mov_b32 s{S_REC}, s{P_WS}
    s_and_b32 s{S_REC+1}, s{P_WS+1}, 0xffff
    s_or_b32 s{S_REC+1}, s{S_REC+1}, {128 << 16}
    s_mov_b32 s{S_REC+2}, {NT*TLC}
    s_mov_b32 s{S_REC+3}, 0x20000
    s_mov_b32 s{S_M}, s{P_M}
    s_and_b32 s{S_M+1}, s{P_M+1}, 0xffff
    s_or_b32 s{S_M+1}, s{S_M+1}, {32 << 16}
    s_mov_b32 s{S_M+2}, {E}
    s_mov_b32 s{S_M+3}, 0x20000
    s_cmp_ge_u32 s{S_WAVE}, {NWK}
    s_cbranch_scc1 B_helper
    """)
    srd(a, S_Z, P_DIST, P_DIST + 1, f"s{S_T1}", f"s{S_T2}")
    a(f"""
    v_lshlrev_b32 v{C0}, 2, v0
    v_lshlrev_b32 v{C0+1}, 1, v0
    s_movk_i32 s{S_T0}, {8*NTW}
    buffer_load_dword v{PE}, v{C0}, s[{S_Z}:{S_Z+3}], 0 offen
    buffer_load_dword v{PE+1}, v{C0}, s[{S_Z}:{S_Z+3}], 0 offen offset:{4*NTW}
    buffer_load_ushort v{PE+2}, v{C0+1}, s[{S_Z}:{S_Z+3}], s{S_T0} offen
    """)
    op_addr(False)
    a("s_waitcnt vmcnt(3)")
    if opt.get("pst") == 1: stamp()
    def stage():
        a(f"""
        s_mov_b32 exec_lo, 0x11111111
        s_mov_b32 exec_hi, 0x11111111
        ds_write_b64 v{T2}, {v2(F0+1)} offset:{L_AB}
        ds_write_b32 v{T3}, v{F0+3} offset:{L_C}
        s_mov_b64 exec, -1
        """)
    f_load()
    a(f"s_mov_b64 exec, vcc\nds_write_b128 v{DG+4}, {v4(DG)} offset:{L_OPS}")
    stage()
    a("s_waitcnt lgkmcnt(0)\ns_barrier")
    for k in range(5): a(f"ds_read_b128 {v4(WG[0]+4*k)}, v{C0} offset:{L_OPS + 256*k}")
    if not opt.get("pst"): stamp()
    f_mask()
    a(f"""
    v_mul_u32_u24 v{T3}, 96, v0
    v_mov_b32 v{DG+12}, 0xc1200000
    v_mov_b32 v{DG+14}, {'0x3fb8aa3b' if '3' in opt.get('rnd', '') else '0xc166d4ca'}
    v_mov_b32 v{DG+15}, 0x41600000
    v_mov_b64 {v2(ZR)}, 0
    v_mov_b64 {v2(ZR+2)}, 0
    """)
    for r in range(8):
        if r & 1: a(f"s_and_b32 s{S_CEN+r}, s{S_CRAW+r//2}, 0xffff0000")
        else: a(f"s_lshl_b32 s{S_CEN+r}, s{S_CRAW+r//2}, 16")
    K1, K2 = opt.get("rbfk", (0, 4))
    if K1: a(f"s_waitcnt vmcnt(2)")
    for k in range(K1): rbf_round(k)
    a(f"s_setprio 2\ns_waitcnt vmcnt(0)")
    if opt.get("pst") == 2: stamp()
    decode(0); decode(1)
    gathers(0)
    a("s_setprio 0")
    decode(2); decode(3)
    cosines(0)
    for k in range(K1, K2): rbf_round(k)
    assert K2 >= 1
    a(f"s_setprio 2\ns_waitcnt vmcnt(0) lgkmcnt(3)")
    a(f"s_cmp_lg_u32 s{S_TRY}, 0\ns_cbranch_scc1 B_rescale\nB_rescaled:")
    own_rows(); gathers(1); a("s_setprio 0"); down(False)
    if not opt.get("pst"): stamp()
    for k in range(K2, NRW):
        if k == NRW - 1:
            a(f"s_cmp_ge_u32 s{S_WAVE}, {-(-(SMAX - k*NTW)//64)}\ns_cbranch_scc1 B_join")
        rbf_round(k)
    a(f"""
    B_join:
    v_mov_b32 v{T2}, 0
    s_waitcnt lgkmcnt(0)
    s_barrier
    ds_read_b128 {v4(RF)}, v{PK} offset:{L_ROW+32}
    ds_read_b64 {v2(F0+1)}, v{T2} offset:{L_INFO}
    """)
    stamp()
    if stamps: a("s_memtime s[68:69]")
    a(f"""
    s_waitcnt lgkmcnt(0)
    v_readfirstlane_b32 s{S_NCH}, v{F0+1}
    v_readfirstlane_b32 s{S_NR}, v{F0+2}
    {f's_mov_b32 s{S_CNT}, 5' if SPLIT else ''}
    s_cmp_ge_u32 s{S_NCH}, {4*64 if SPLIT else -1}
    s_cselect_b32 s{S_T0}, {4*64}, 0
    s_sub_u32 s{S_SPL}, s{S_NCH}, s{S_T0}
    s_add_u32 s{S_NV}, s{S_NCH}, s{S_T0}
    """)
    basis()
    a("s_nop 3\ns_branch B_mid")
    LN = DM; MK = DM + 4; JJ = DM + 8; TAU = DM + 12; X0 = DG; X1 = DG + 1; X2 = DG + 2
    a(f"""
    B_helper:
    s_mul_i32 s{S_PF}, s2, {NH}
    s_add_u32 s{S_PF}, s{S_PF}, s{S_WAVE}
    s_add_u32 s{S_PF}, s{S_PF}, {SPF - NWK}
    s_lshl_b32 s{S_PF}, s{S_PF}, 7
    s_add_u32 s{S_PF}, s{S_PF}, 60
    s_waitcnt vmcnt(0)
    """)
    stage()
    a(f"""
    s_waitcnt lgkmcnt(0)
    s_barrier
    B_list:
    s_setprio {opt.get("hprio", 1)}
    v_lshlrev_b32 v{T2}, 3, v{LANE}
    v_lshlrev_b32 v{T3}, 2, v{LANE}
    """)
    for u in range(4):
        a(f"ds_read_u16 v{LN+u}, v{T2} offset:{L_AB + 512*u + 6}\nds_read_b32 v{MK+u}, v{T3} offset:{L_C + 256*u}\nv_add_u32 v{TAU+u}, {64*u}, v{LANE}")
    a(f"""
    s_cmp_lg_u32 s{S_ROUND}, 0
    s_waitcnt lgkmcnt(0)
    s_cbranch_scc1 B_generic
    v_add_u32 v{X0}, v{LN}, v{LN+1}
    v_add3_u32 v{X0}, v{X0}, v{LN+2}, v{LN+3}
    v_bcnt_u32_b32 v{X1}, v{MK}, 0
    v_bcnt_u32_b32 v{X1}, v{MK+1}, v{X1}
    v_bcnt_u32_b32 v{X1}, v{MK+2}, v{X1}
    v_bcnt_u32_b32 v{X1}, v{MK+3}, v{X1}
    v_cmp_ne_u32 vcc, v{X0}, v{X1}
    s_mov_b32 s{S_NR}, 1
    s_cbranch_vccz B_count
    B_generic0:
    v_max_u32 v{X0}, v{LN}, v{LN+1}
    v_max3_u32 v{X0}, v{X0}, v{LN+2}, v{LN+3}
    """)
    wave_scan(a, X0, "v_max_u32")
    a(f"""
    s_nop 0
    v_readlane_b32 s{S_NR}, v{X0}, 63
    s_add_u32 s{S_NR}, s{S_NR}, {JMAX-1}
    s_mul_i32 s{S_NR}, s{S_NR}, {(2**20 + JMAX - 1)//JMAX}
    s_lshr_b32 s{S_NR}, s{S_NR}, 20
    B_generic:
    """)
    for u in range(4):
        a(f"v_subrev_u32 v{X1}, s{S_JB}, v{LN+u}\nv_med3_i32 v{X1}, v{X1}, 0, {JMAX}\nv_bfm_b32 v{MK+u}, v{X1}, 0")
    a("B_count:")
    for u in range(4):
        nl = min(64, max(0, 16 * NWK - 64 * u))
        if nl == 0: continue
        if nl < 64: a(f"s_bfm_b64 exec, {nl}, 0")
        a(f"v_add_u32 v{X1}, -1, v{MK+u}\nv_and_b32 v{MK+u}, v{X1}, v{MK+u}\nv_or_b32 v{TAU+u}, 0x100, v{TAU+u}")
        if nl < 64: a("s_mov_b64 exec, -1")
    a(f"""
    v_bcnt_u32_b32 v{X0}, v{MK}, 0
    v_bcnt_u32_b32 v{X0}, v{MK+1}, v{X0}
    v_bcnt_u32_b32 v{X0}, v{MK+2}, v{X0}
    v_bcnt_u32_b32 v{X0}, v{MK+3}, v{X0}
    """)
    wave_scan(a, X0)
    NBIT = opt.get("nbit", 7)
    a(f"""
    v_or_b32 v{X1}, v{MK}, v{MK+1}
    v_readlane_b32 s{S_NCH}, v{X0}, 63
    v_or3_b32 v{X2}, v{X1}, v{MK+2}, v{MK+3}
    s_cmp_gt_u32 s{S_NCH}, {CAP}
    s_cbranch_scc1 B_generic0
    s_sub_u32 s{S_T2}, s{S_WAVE}, {NWK}
    s_mul_i32 s{S_T2}, s{S_T2}, {NBIT}
    s_add_u32 s{S_T1}, s{S_T2}, {NBIT}
    s_cmp_lg_u32 s{S_WAVE}, {NW-1}
    s_cbranch_scc1 B_bits
    s_mov_b32 s{S_T1}, 32
    s_add_u32 s{S_T0}, s{S_NCH}, 15
    s_lshr_b32 s{S_T0}, s{S_T0}, 4
    s_lshl_b32 s{S_T0}, s{S_T0}, 6
    v_mov_b32 v{X0}, 0x8000
    v_add_u32 v{X1}, s{S_NCH}, v{LANE}
    v_lshlrev_b32 v{X1}, 1, v{X1}
    v_mov_b32 v{T2}, 0
    v_mov_b32 v{DG+4}, s{S_T0}
    v_mov_b32 v{DG+5}, s{S_NR}
    ds_write_b16 v{X1}, v{X0} offset:{L_LIST}
    ds_write2_b32 v{T2}, v{T2}, v{T2} offset0:{L_CTR//4} offset1:{L_FLAG//4}
    ds_write_b64 v{T2}, {v2(DG+4)} offset:{L_INFO}
    B_bits:
    s_bfm_b32 s{S_LOW}, s{S_T2}, 0
    """)
    for u in range(4):
        a(f"v_and_b32 v{JJ+u}, s{S_LOW}, v{MK+u}\nv_bcnt_u32_b32 v{JJ+u}, v{JJ+u}, 0")
    a(f"v_add_u32 v{X0}, v{JJ}, v{JJ+1}\nv_add3_u32 v{X0}, v{X0}, v{JJ+2}, v{JJ+3}")
    for u in range(4): a(f"v_lshl_add_u32 v{TAU+u}, v{JJ+u}, 8, v{TAU+u}")
    wave_scan(a, X0)
    a(f"""
    s_nop 0
    v_readlane_b32 s{S_BASE}, v{X0}, 63
    B_bit:
    s_lshl_b32 s{S_BIT}, 1, s{S_T2}
    v_and_b32 v{X0}, s{S_BIT}, v{X2}
    v_cmp_ne_u32 vcc, 0, v{X0}
    s_cbranch_vccz B_bit_next
    """)
    for u in range(4): a(f"v_and_b32 v{JJ+u}, s{S_BIT}, v{MK+u}")
    for u in range(4): a(f"v_cmp_ne_u32 s[{S_CEN+2*u}:{S_CEN+2*u+1}], 0, v{JJ+u}")
    for u in range(4):
        m = f"s[{S_CEN+2*u}:{S_CEN+2*u+1}]"
        a(f"""
        v_mbcnt_lo_u32_b32 v{X0}, s{S_CEN+2*u}, 0
        v_mbcnt_hi_u32_b32 v{X0}, s{S_CEN+2*u+1}, v{X0}
        s_mov_b64 exec, {m}
        v_add_lshl_u32 v{X0}, v{X0}, s{S_BASE}, 1
        s_bcnt1_i32_b64 s{S_T0}, {m}
        ds_write_b16 v{X0}, v{TAU+u} offset:{L_LIST}
        v_add_u32 v{TAU+u}, 0x100, v{TAU+u}
        s_add_u32 s{S_BASE}, s{S_BASE}, s{S_T0}
        s_mov_b64 exec, -1
        """)
    a(f"""
    B_bit_next:
    s_add_u32 s{S_T2}, s{S_T2}, 1
    s_cmp_lt_u32 s{S_T2}, s{S_T1}
    s_cbranch_scc1 B_bit
    s_setprio 0
    s_waitcnt vmcnt(0) lgkmcnt(0)
    s_barrier
    s_mov_b32 s{S_Y}, s{P_M}
    s_and_b32 s{S_Y+1}, s{P_M+1}, 0xffff
    s_mov_b32 s{S_Y+2}, {E*32}
    s_mov_b32 s{S_Y+3}, 0x20000
    B_help:
    """)
    spf(opt.get("spfn", 2))
    a(f"s_cmp_lt_u32 s{S_PF}, {E*32}\ns_waitcnt lgkmcnt(0)\ns_cbranch_scc1 B_help\ns_branch B_loop_done")
    a("B_loop:")
    loop_start = len(a.L)
    for b in range(5):
        n = (b + 1) % 5
        a("s_waitcnt vmcnt(0)")
        if b == 4:
            if SPLIT: a(f"s_cmp_ge_u32 s{S_TK}, s{S_SPL}\ns_cbranch_scc1 B_part\nB_part_done:")
            decode(0)
        down()
        if b == 3: f_load()
        gathers(n)
        if b == 1: f_entry_pre()
        if b == 2: f_desc_pre()
        if b == 1 and stamps and not opt.get("trace"): a("s_add_u32 s73, s73, 1")
        if opt.get("trace"):
            a(f"s_mov_b32 s77, m0\ns_memrealtime s[94:95]\ns_waitcnt lgkmcnt(0)\ns_lshr_b32 s75, s73, 1\ns_mov_b32 m0, s75\ns_bitcmp1_b32 s73, 0\ns_cbranch_scc1 B_tr{b}\nv_writelane_b32 v{T2}, s94, m0\ns_branch B_trb{b}\nB_tr{b}:\nv_writelane_b32 v{T3}, s94, m0\nB_trb{b}:\ns_add_u32 s73, s73, 1\ns_mov_b32 m0, s77")
        if b == 0: a("B_mid:")
        if b == 0: f_ticket()
        if b == 1: f_entry()
        if b == 2: f_desc()
        XO = opt.get("xord", 1)
        def xcvt():
            for j in range(8): a(f"v_cvt_pk_f16_f32 v{DM+j}, v{DG+2*j}, v{DG+2*j+1}")
        cosines(n)
        for j in range(8): a(f"v_pk_mul_f32 {v2(DG+2*j)}, {v2(DM+2*j)}, {v2(DG+2*j)}")
        if XO == 2: xcvt()
        if prio: a("s_setprio 2")
        lock(PK + b)
        a(f"ds_read_b128 {v4(RF)}, v{PK+n} offset:{L_ROW+32}")
        nf = 1
        if XO == 1: xcvt()
        a(f"""
        s_waitcnt lgkmcnt({nf})
        v_cmp_ne_u32 vcc, v{LK}, v{SE}
        s_mov_b64 exec, vcc
        """)
        rmw_half(1, PK + b, False); rmw_half(0, PK + b, False)
        if prio: a("s_setprio 0")
        a(f"""
        s_not_b64 {S_LM_}, vcc
        s_cbranch_scc0 B_nolose{b}
        s_and_b64 {S_SAVE_}, {S_LM_}, {S_PM_}
        s_cbranch_scc0 B_stash{b}
        s_swappc_b64 {S_RET_}, {S_DRN_}
        B_stash{b}:
        s_mov_b64 exec, {S_LM_}
        s_or_b64 {S_PM_}, {S_PM_}, {S_LM_}
        """)
        if stamps: a(f"s_bcnt1_i32_b64 s{S_T0}, {S_LM_}\ns_add_u32 s{S_FAST}, s{S_FAST}, s{S_T0}")
        for j in range(4): a(f"v_mov_b64 {v2(PE+2*j)}, {v2(DM+2*j)}")
        a(f"v_mov_b32 v{PA}, v{PK+b}\nB_nolose{b}:")
        a("s_mov_b64 exec, -1")
        if b == 4: a(f"s_cmp_ge_u32 s{S_TK}, s{S_NV}\ns_cbranch_scc1 B_loop_exit")
        elif SPLIT: a(f"s_cmp_eq_u32 s{S_CNT}, {b+1}\ns_cbranch_scc1 B_loop_exit")
        if b == 0: decode(4)
        if b == 3: f_mask()
        if b == 4: decode(1); decode(2); decode(3)
        a("s_waitcnt lgkmcnt(2)")
        basis()
    if opt.get("drop"):
        a.L[loop_start:] = [l for l in a.L[loop_start:] if not any(re.match(p, l.strip()) for p in opt["drop"])]
    a(f"""
    s_branch B_loop
    B_loop_exit:
    s_waitcnt lgkmcnt(2)
    B_loop_done:
    s_add_u32 s{S_ROUND}, s{S_ROUND}, 1
    s_mov_b64 {S_LM_}, -1
    s_cmp_lt_u32 s{S_ROUND}, s{S_NR}
    s_cbranch_scc1 B_again
    """)
    if opt.get("trace"):
        a(f"s_lshl_b32 s{S_T0}, s3, 13\ns_add_u32 s{S_T0}, s{S_T0}, {WS_STAMP + (1 << 20)}")
        srd(a, S_REC, P_WS, P_WS + 1, f"s{S_T0}", 8192)
        a(f"v_lshlrev_b32 v{F0}, 3, v0\nbuffer_store_dwordx2 v[{T2}:{T3}], v{F0}, s[{S_REC}:{S_REC+3}], 0 offen\ns_nop 1")
    NB = -(-SMAX // 64); NE = -(-NB // NW)
    OPU = [14, 18, 22]
    assert NE <= 4
    a(f"""
    s_cmp_lg_u32 s{S_TRY}, 0
    s_cbranch_scc1 B_masks
    """)
    for k in range(NE): a(f"s_mov_b64 s[{S_BAD+2*k}:{S_BAD+2*k+1}], -1")
    a("B_masks:")
    a(f"s_lshl_b32 s{S_T1}, s{S_ROW0}, 5\ns_lshl_b32 s{S_T2}, s{S_NROW}, 5")
    srd(a, S_Z, P_M, P_M + 1, f"s{S_T1}", f"s{S_T2}")
    a(f"""
    v_and_b32 v{T3}, 0x3df, v0
    v_bfe_u32 v{MO}, v0, 5, 1
    v_lshlrev_b32 v{MO}, 4, v{MO}
    v_lshl_add_u32 v{MO}, v{T3}, 5, v{MO}
    """)
    mrow_loads(range(NE), mreg)
    a(f"""
    s_cmp_eq_u64 {S_PM_}, 0
    s_cbranch_scc1 B_nopend
    s_swappc_b64 {S_RET_}, {S_DRN_}
    s_mov_b64 exec, -1
    B_nopend:
    v_mov_b32 v{T2}, 0
    """)
    op_addr(True)
    for k in range(3): a(f"ds_read_b128 {v4(OPU[k])}, v{C0} offset:{L_OPS + 256*(5+k)}")
    a(f"""
    ds_read_b128 {v4(PE+8)}, v{T2} offset:{L_OPS + 2048}
    v_mul_u32_u24 v{T3}, 48, v0
    s_mov_b64 {S_LM_}, 0
    s_mul_i32 s{S_JB}, s{S_TRY}, {RSTEP}
    s_sub_i32 s{S_JB}, s{S_JB}, 674
    v_mov_b32 v{PA+1}, 0x207
    s_waitcnt lgkmcnt(0)
    v_add3_u32 v{PA}, v{PE+8}, v{PE+9}, s{S_JB}
    v_add3_u32 v{PA}, v{PE+10}, v{PE+11}, v{PA}
    v_ldexp_f32 v{PA}, 1.0, v{PA}
    """)
    srd(a, S_Y, P_OUT, P_OUT + 1, f"s{S_T1}", f"s{S_T2}")
    stamp()
    if stamps: a("s_memtime s[70:71]")
    a("s_barrier")
    stamp()
    EB0, EB1 = AC, 2
    def erd(k):
        r = EB0 if k % 2 == 0 else EB1
        if k: a(f"v_add_u32 v{T3}, {48*NTH}, v{T3}")
        a(f"ds_read_b128 {v4(r)}, v{T3} offset:{L_ROW}\nds_read_b128 {v4(r+4)}, v{T3} offset:{L_ROW+16}\nds_read_b128 {v4(r+8)}, v{T3} offset:{L_ROW+32}")
    erd(0)
    for k in range(NE):
        r = EB0 if k % 2 == 0 else EB1
        if k == NE - 1:
            a(f"s_cmp_ge_u32 s{S_WAVE}, {NB - k*NW}\ns_cbranch_scc1 B_epi_done")
        if k + 1 < NE: erd(k + 1)
        a(f"s_waitcnt lgkmcnt({3 if k + 1 < NE else 0})" + (" vmcnt(0)" if k == 0 else ""))
        a(f"""
        v_mfma_f32_32x32x16_f16 {v16(DG)}, {v4(OPU[2])}, {v4(r+8)}, 0
        v_mfma_f32_32x32x16_f16 {v16(DM)}, {v4(OPU[0])}, {v4(r)}, 0
        v_mfma_f32_32x32x16_f16 {v16(DM)}, {v4(OPU[1])}, {v4(r+4)}, {v16(DM)}
        """)
        m = mreg(k)
        for j in range(8):
            a(f"v_lshlrev_b32 v{PE+2*j}, 16, v{m+j}\nv_and_b32 v{PE+2*j+1}, 0xffff0000, v{m+j}")
        for j in range(8):
            a(f"v_pk_mul_f32 {v2(DG+2*j)}, {v2(DG+2*j)}, {v2(PA)} op_sel_hi:[1,0]")
        a(f"v_cmp_class_f32 vcc, v{DM}, v{PA+1}")
        for j in range(8):
            a(f"v_pk_fma_f32 {v2(PE+2*j)}, {v2(DM+2*j)}, {v2(DG+2*j)}, {v2(PE+2*j)}")
        for j in range(8):
            a(f"v_cvt_pk_bf16_f32 v{m+j}, v{PE+2*j}, v{PE+2*j+1}")
        bad = f"s[{S_BAD+2*k}:{S_BAD+2*k+1}]"
        a(f"""
        s_mov_b32 s{S_T0}, {k*NTH*32}
        s_mov_b64 exec, {bad}
        s_cbranch_execz B_nostore{k}
        buffer_store_dwordx4 {v4(m)}, v{MO}, s[{S_Y}:{S_Y+3}], s{S_T0} offen {outpol}
        buffer_store_dwordx4 {v4(m+4)}, v{MO}, s[{S_Y}:{S_Y+3}], s{S_T0} offen offset:1024 {outpol}
        B_nostore{k}:
        s_mov_b64 exec, -1
        s_and_b64 {bad}, {bad}, vcc
        s_or_b64 {S_LM_}, {S_LM_}, {bad}
        """)
    a(f"""
    B_epi_done:
    v_mov_b32 v{T2}, 0
    s_cmp_eq_u64 {S_LM_}, 0
    s_cbranch_scc1 B_clean
    ds_write_b32 v{T2}, v{PA+1} offset:{L_FLAG}
    B_clean:
    s_waitcnt lgkmcnt(0)
    s_barrier
    ds_read_b32 v{T2}, v{T2} offset:{L_FLAG}
    s_add_u32 s{S_TRY}, s{S_TRY}, 1
    s_waitcnt lgkmcnt(0)
    v_readfirstlane_b32 s{S_T0}, v{T2}
    s_cmp_gt_u32 s{S_TRY}, {RMAX}
    s_cselect_b32 s{S_T0}, 0, s{S_T0}
    s_cmp_lg_u32 s{S_T0}, 0
    s_cbranch_scc1 B_redo
    """)
    if stamps:
        a(f"s_waitcnt vmcnt(0)")
        stamp()
        a(f"""
        s_waitcnt lgkmcnt(0)
        s_lshl_b32 s{S_T0}, s3, 10
        s_add_u32 s{S_T0}, s{S_T0}, {WS_STAMP + 524288}
        """)
        srd(a, S_X, P_WS, P_WS + 1, f"s{S_T0}", 1024)
        a(f"s_lshl_b32 s{S_T1}, s{S_WAVE}, 6\nv_mov_b32 v9, s{S_T1}\ns_mov_b64 exec, 1")
        for i in range(nst[0]):
            a(f"v_mov_b32 v8, s{S_ST+2*i}\nbuffer_store_dword v8, v9, s[{S_X}:{S_X+3}], 0 offen offset:{4*i}\ns_nop 1")
        a(f"s_sub_u32 s70, s70, s68\nv_mov_b32 v8, s70\nbuffer_store_dword v8, v9, s[{S_X}:{S_X+3}], 0 offen offset:52\ns_nop 1")
        a(f"v_mov_b32 v8, s{S_FAST}\nbuffer_store_dword v8, v9, s[{S_X}:{S_X+3}], 0 offen offset:56\ns_nop 1")
        a(f"v_mov_b32 v8, s{S_ANY}\nbuffer_store_dword v8, v9, s[{S_X}:{S_X+3}], 0 offen offset:60\ns_nop 1")
        a(f"s_getreg_b32 s{S_T0}, hwreg(HW_REG_XCC_ID, 0, 4)\nv_mov_b32 v8, s{S_T0}\nbuffer_store_dword v8, v9, s[{S_X}:{S_X+3}], 0 offen offset:48")
        a(f"s_nop 1\nv_mov_b32 v8, s73\nbuffer_store_dword v8, v9, s[{S_X}:{S_X+3}], 0 offen offset:44")
    a("B_end:\ns_endpgm")
    a(f"""
    B_again:
    s_cmp_eq_u64 {S_PM_}, 0
    s_cbranch_scc1 B_again1
    s_swappc_b64 {S_RET_}, {S_DRN_}
    s_mov_b64 exec, -1
    B_again1:
    s_add_u32 s{S_JB}, s{S_JB}, {JMAX}
    v_lshrrev_b32 v{F0}, 2, v0
    s_cmp_ge_u32 s{S_WAVE}, {NWK}
    s_waitcnt vmcnt(0) lgkmcnt(0)
    s_barrier
    s_cbranch_scc1 B_list
    """)
    f_desc_pre(); f_desc(); a("s_waitcnt lgkmcnt(0)")
    f_load(); f_mask()
    a("s_waitcnt vmcnt(0)")
    for i in range(4): decode(i)
    gathers(0)
    cosines(0)
    a(f"s_waitcnt vmcnt(0)")
    down(); gathers(1)
    a("s_branch B_join")
    if SPLIT:
        a(f"""
        B_part:
        s_cmp_ge_u32 s{S_TK}, s{S_NV}
        s_cbranch_scc1 B_part_done
        s_sub_u32 s{S_T0}, s{S_TK}, s{S_SPL}
        s_lshr_b32 s{S_T0}, s{S_T0}, 7
        s_sub_u32 s{S_CNT}, 4, s{S_T0}
        v_bfrev_b32 v{F0}, 2
        s_cmp_ge_u32 s{S_CNT}, 3
        s_cbranch_scc1 B_part_mask
        s_cmp_eq_u32 s{S_CNT}, 2
        s_cbranch_scc1 B_part2
        v_mov_b32 v{RB}, v{RB+3}
        v_lshrrev_b32 v{RB+1}, 16, v{RB+7}
        v_lshrrev_b32 v{INV}, 16, v{INV}
        s_branch B_part_mask
        B_part2:
        v_mov_b32 v{RB}, v{RB+6}
        v_mov_b32 v{RB+2}, v{RB+3}
        v_lshrrev_b32 v{RB+1}, 16, v{RB+5}
        v_and_or_b32 v{RB+1}, v{RB+7}, s{S_HI}, v{RB+1}
        v_lshrrev_b32 v{INV}, 12, v{INV}
        B_part_mask:
        s_lshl_b32 s{S_T0}, s{S_CNT}, 2
        s_lshl_b32 s{S_T0}, -1, s{S_T0}
        v_or_b32 v{INV}, s{S_T0}, v{INV}
        s_branch B_part_done
        """)
    a("B_redo:\ns_waitcnt vmcnt(0)\ns_branch B_restart")
    a(f"B_rescale:\ns_mul_i32 s{S_T0}, s{S_TRY}, {-RSTEP}")
    for j in range(8):
        r = WD[0] + j
        a(f"""
        v_lshlrev_b32 v{AC}, 16, v{r}
        v_and_b32 v{AC+1}, 0xffff0000, v{r}
        v_ldexp_f32 v{AC}, v{AC}, s{S_T0}
        v_ldexp_f32 v{AC+1}, v{AC+1}, s{S_T0}
        v_cvt_pk_bf16_f32 v{r}, v{AC}, v{AC+1}
        """)
    a("s_branch B_rescaled")
    a(f"B_drain:\ns_mov_b64 exec, {S_PM_}")
    if opt.get("safe"):
        a(f"""
        s_add_u32 s{S_ANY}, s{S_ANY}, 1
        s_cmp_lt_u32 s{S_ANY}, {opt["safe"]}
        s_cbranch_scc1 B_drain1
        s_mov_b64 {S_PM_}, 0
        s_waitcnt lgkmcnt(0)
        s_setpc_b64 {S_RET_}
        B_drain1:
        """)
    lock(PA)
    a(f"""
    s_waitcnt lgkmcnt(0)
    v_cmp_ne_u32 vcc, v{LK}, v{SE}
    s_mov_b64 exec, vcc
    s_andn2_b64 {S_PM_}, {S_PM_}, vcc
    """)
    rmw_half(1, PA, True); rmw_half(0, PA, True)
    a(f"""
    s_and_b64 {S_SAVE_}, {S_LM_}, {S_PM_}
    s_cbranch_scc1 B_drain
    s_setpc_b64 {S_RET_}
    B_codeend:
    s_endpgm
    """)
    return head(name) + a.text(), desc(name, NV), nst[0]

KNAME = "gather_scatter__molecular_angular_gemnet__graph_kernel"
def full(optA, optB, header=""):
    fused = optB.get("fused", 0)
    if fused: optA = dict(optA, fused=1, dpol="sc1")
    ba, da, na = gen_part(KNAME if fused else "part_kernel", optA)
    bb, db, nb = gen_main(KNAME if fused else "accum_kernel", optB)
    la = f"; @launch kernel=part_kernel grid=({NT},1,1) block=(1024,1,1) lds={LDS}\n"
    lb = f"; @launch kernel=accum_kernel grid=({NT},1,1) block=(1024,1,1) lds={LDS}\n"
    ls = f"; @launch kernel=stamp_kernel grid=(1,1,1) block=(64,1,1) lds=0\n"
    seq = optB.get("launches", "AB")
    if fused:
        lb = ""
        la = f"; @launch {'kernel=' + KNAME + ' ' if 'S' in seq or fused == 2 else ''}grid=({NT},1,1) block=(1024,1,1) lds={LDS}\n"
    lc = f"; @launch kernel=diag_kernel grid=(1,1,1) block=(64,1,1) lds=0\n"
    s = header + "".join({"A": la, "B": lb, "S": ls, "C": lc, "E": f"; @launch kernel=nop_kernel grid=({optB.get('egrid', 8)},1,1) block=(64,1,1) lds=0\n"}[c] for c in seq)
    if "E" in seq:
        bb += head("nop_kernel") + "    s_endpgm\n"; db += desc("nop_kernel", 8)
    if "C" in seq:
        x, y, mul, sh = optB["diag"]
        bb += head("diag_kernel") + f"""
    s_cmp_ge_u32 s2, 1
    s_cbranch_scc1 C_end
    s_memrealtime s[8:9]
    s_load_dwordx2 s[4:5], s[0:1], 104
    s_waitcnt lgkmcnt(0)
    s_add_u32 s4, s4, {WS_STAMP}
    s_addc_u32 s5, s5, 0
    s_load_dword s10, s[4:5], {max(x, 0)}
    s_load_dword s11, s[4:5], {max(y, 0)}
    s_waitcnt lgkmcnt(0)
    {"s_mov_b32 s11, s8" if y < 0 else ""}
    {"s_mov_b32 s10, 0" if x < 0 else ""}
    s_sub_u32 s10, s11, s10
    s_lshr_b32 s10, s10, {sh}
    s_min_u32 s10, s10, 30000
    s_mul_i32 s10, s10, {mul}
    s_add_u32 s10, s10, 500
C_spin:
    s_memrealtime s[12:13]
    s_waitcnt lgkmcnt(0)
    s_sub_u32 s14, s12, s8
    s_cmp_lt_u32 s14, s10
    s_cbranch_scc1 C_spin
C_end:
    s_endpgm
"""
        db += desc("diag_kernel", 8)
    if "S" in seq:
        bb += head("stamp_kernel") + f"""
    s_cmp_ge_u32 s2, 1
    s_cbranch_scc1 S_end
    s_memrealtime s[8:9]
    s_load_dwordx2 s[4:5], s[0:1], 104
    s_waitcnt lgkmcnt(0)
    s_add_u32 s12, s4, {WS_STAMP + 262144}
    s_addc_u32 s13, s5, 0
    s_and_b32 s13, s13, 0xffff
    s_mov_b32 s14, 4
    s_mov_b32 s15, 0x20000
    v_lshlrev_b32 v1, 2, v0
    v_mov_b32 v2, s8
    buffer_store_dword v2, v1, s[12:15], 0 offen
S_end:
    s_endpgm
"""
        db += desc("stamp_kernel", 8)
    s += '.amdgcn_target "amdgcn-amd-amdhsa--gfx950"\n' + ba + bb + da + db
    return s, na, nb
DEF_A = {"ldpol": "nt", "stpol": "sc1", "warm": 1, "warmlines": 256, "warmn": 1, "warmdist": 1, "hold": 5, "ks": (0, 0, 0), "kpre": 3, "jit": 1, "dpol": "sc1", "pat": "ns", "shape": 0, "touch": 2, "ilv": 1}
DEF_B = {"spf": 256 * 256, "spfn": 4, "outpol": "nt"}
if __name__ == "__main__":
    HEADER = open("gather_scatter__molecular_angular_gemnet__graph.s.ref").read().split("; Override launch")[0]
    out = sys.argv[1] if len(sys.argv) > 1 else "gather_scatter__molecular_angular_gemnet__graph.s"
    open(out, "w").write(full(DEF_A, DEF_B, HEADER)[0])
```

```python
import sys

E = 800000; T = 12800000; NT = 256
TILE = T // NT
EB = E // NT
SO_DEF = 3144
RPL = 20
TL = -(-(TILE + NT * (RPL - 1)) // RPL)
TS = TL * 128
TLC = -(-TL // 128) * 128
WS_DESC = NT * TLC * 128
WS_OPS = WS_DESC + NT * NT * 16
WS_EXP = WS_OPS + 2048
WS_STAMP = WS_OPS + 8192 + 256
LDS = 163840
PIVOT = 8

class Asm:
    def __init__(self): self.L = []
    def __call__(self, s):
        for ln in s.strip("\n").split("\n"):
            ln = ln.strip()
            if ln: self.L.append(ln if ln.endswith(":") and not ln.startswith(";") else "    " + ln)
    def text(self): return "\n".join(self.L) + "\n"

def head(name):
    return f".text\n.globl {name}\n.p2align 8\n.type {name},@function\n{name}:\n"
def desc(name, vgpr, sgpr=102):
    accum = min(256, (vgpr + 3) // 4 * 4)
    return f""".section .rodata,"a"
.p2align 6
.amdhsa_kernel {name}
  .amdhsa_next_free_vgpr {vgpr}
  .amdhsa_next_free_sgpr {sgpr}
  .amdhsa_accum_offset {accum}
  .amdhsa_group_segment_fixed_size 0
  .amdhsa_kernarg_size 112
  .amdhsa_user_sgpr_count 2
  .amdhsa_user_sgpr_kernarg_segment_ptr 1
  .amdhsa_system_sgpr_workgroup_id_x 1
  .amdhsa_float_denorm_mode_32 3
.end_amdhsa_kernel
"""

def srd(a, d, lo, hi, off_s, size):
    a(f"""
    s_add_u32 s{d}, s{lo}, {off_s}
    s_addc_u32 s{d+1}, s{hi}, 0
    s_and_b32 s{d+1}, s{d+1}, 0xffff
    s_mov_b32 s{d+2}, {size}
    s_mov_b32 s{d+3}, 0x20000
    """)

def code_touch(a, pref, d, vt, vd, lo, hi, tid128):
    a(f"""
    s_getpc_b64 s[{d}:{d+1}]
    {pref}_pc0:
    {"" if lo == pref + "_pc0" else f"s_add_u32 s{d}, s{d}, {lo}-{pref}_pc0" + chr(10) + f"s_addc_u32 s{d+1}, s{d+1}, 0"}
    {tid128}
    v_cmp_gt_u32 vcc, {hi}-{lo}, v{vt}
    s_and_saveexec_b64 s[{d+2}:{d+3}], vcc
    s_cbranch_execz {pref}_touched
    v_mov_b32 v{vt+1}, s{d+1}
    v_add_co_u32 v{vt}, vcc, s{d}, v{vt}
    s_nop 1
    v_addc_co_u32 v{vt+1}, vcc, 0, v{vt+1}, vcc
    global_load_dword v{vd}, v[{vt}:{vt+1}], off
    {pref}_touched:
    s_mov_b64 exec, -1
    """)

def wave_scan(a, v, op="v_add_u32"):
    for m in ("row_shr:1 row_mask:0xf bank_mask:0xf bound_ctrl:1", "row_shr:2 row_mask:0xf bank_mask:0xf bound_ctrl:1",
              "row_shr:4 row_mask:0xf bank_mask:0xf bound_ctrl:1", "row_shr:8 row_mask:0xf bank_mask:0xf bound_ctrl:1",
              "row_bcast:15 row_mask:0xa bank_mask:0xf", "row_bcast:31 row_mask:0xc bank_mask:0xf"):
        a(f"s_nop 1\n{op}_dpp v{v}, v{v}, v{v} {m}")

def operands_load(a, S_WAVE, V):
    a(f"""
    s_cmp_ge_u32 s2, 8
    s_cbranch_scc1 A_ops_done
    s_cmp_lg_u32 s{S_WAVE}, 15
    s_cbranch_scc1 A_ops_done
    s_load_dword s100, s[98:99], 0
    s_mov_b64 s[16:17], s[10:11]
    s_mov_b32 s18, 768
    s_mov_b32 s22, 0
    s_mov_b32 s24, 96
    s_lshl_b32 s25, s2, 5
    s_cmp_lt_u32 s2, 3
    s_cbranch_scc1 A_ops_load
    s_mov_b64 s[16:17], s[12:13]
    s_mov_b32 s18, 512
    s_mov_b32 s22, {E*32}
    s_mov_b32 s24, 32
    s_andn2_b32 s25, 1, s2
    s_lshl_b32 s25, s25, 8
    s_cmp_lt_u32 s2, 5
    s_cbranch_scc1 A_ops_load
    s_mov_b64 s[16:17], s[14:15]
    s_mov_b32 s22, 0
    s_cmp_lt_u32 s2, 7
    s_cbranch_scc1 A_ops_load
    s_mov_b64 s[16:17], s[8:9]
    s_mov_b32 s18, 256
    A_ops_load:
    s_and_b32 s17, s17, 0xffff
    s_mov_b32 s19, 0x20000
    s_mov_b32 s20, s94
    s_and_b32 s21, s95, 0xffff
    s_mov_b32 s23, 0x20000
    v_and_b32 v23, 30, v29
    v_and_b32 v28, 0xfc, v4
    v_bfe_u32 v25, v0, 2, 4
    v_mul_u32_u24 v25, {E*32//16}, v25
    v_and_or_b32 v25, v1, 48, v25
    buffer_load_dword v{V+24}, v28, s[16:19], 0 offen
    buffer_load_dword v{V+25}, v28, s[16:19], 0 offen offset:256
    buffer_load_dword v{V+26}, v28, s[16:19], 0 offen offset:512
    """)
    assert (E * 32 // 16) % 64 == 0
    for j in range(4):
        a(f"s_mov_b32 s26, {j * (E*32//64)}\nbuffer_load_dwordx4 v[{V+8+4*j}:{V+11+4*j}], v25, s[20:23], s26 offen")
    for j in range(8):
        a(f"buffer_load_ushort v{V+j}, v23, s[16:19], s25 offen\ns_add_u32 s25, s25, s24")
    a("A_ops_done:")

def operands_store(a, S_WAVE, V, srd_, t0, t1, t2):
    a(f"""
    s_cmp_ge_u32 s2, 8
    s_cbranch_scc1 A_ops2_done
    s_cmp_lg_u32 s{S_WAVE}, 15
    s_cbranch_scc1 A_ops2_done
    v_mov_b32 v20, 0
    v_mov_b32 v21, 0
    """)
    for j in range(3):
        a(f"v_bfe_u32 v22, v{V+24+j}, 7, 8\nv_bfe_u32 v23, v{V+24+j}, 23, 8\nv_max3_u32 v20, v20, v22, v23")
    for j in range(16):
        a(f"v_bfe_u32 v22, v{V+8+j}, 7, 8\nv_bfe_u32 v23, v{V+8+j}, 23, 8\nv_max3_u32 v21, v21, v22, v23")
    wave_scan(a, 20, "v_max_u32")
    a("v_sub_u32 v21, 0, v21\nv_and_b32 v21, 0xff, v21")
    wave_scan(a, 21, "v_max_u32")
    a(f"""
    v_readlane_b32 s{t0}, v20, 63
    v_readlane_b32 s{t1}, v21, 63
    s_sub_u32 s{t1}, 0, s{t1}
    s_and_b32 s{t1}, s{t1}, 0xff
    s_add_u32 s{t0}, s{t0}, s{t1}
    v_mov_b32 v24, s{t0}
    s_sub_i32 s{t1}, 140, s{t0}
    s_cmp_eq_u32 s2, 1
    s_addc_u32 s{t1}, s{t1}, 0
    s_sub_i32 s{t0}, 226, s{t0}
    s_sub_u32 s{t2}, s2, 3
    s_cmp_lt_u32 s{t2}, 2
    s_cselect_b32 s{t0}, s{t0}, s{t1}
    """)
    for j in range(8):
        a(f"v_lshlrev_b32 v{V+j}, 16, v{V+j}\nv_ldexp_f32 v{V+j}, v{V+j}, s{t0}")
    a("s_cbranch_scc1 A_ops_bf16")
    for j in range(4): a(f"v_cvt_pk_f16_f32 v{20+j}, v{V+2*j}, v{V+2*j+1}")
    a("s_branch A_ops_store\nA_ops_bf16:")
    for j in range(4): a(f"v_cvt_pk_bf16_f32 v{20+j}, v{V+2*j}, v{V+2*j+1}")
    a(f"""
    A_ops_store:
    s_lshl_b32 s{t0}, s2, 8
    s_add_u32 s{t0}, s{t0}, {WS_OPS - WS_DESC}
    s_lshr_b32 s{t1}, s2, 1
    s_lshl_b32 s{t1}, s{t1}, 2
    s_add_u32 s{t1}, s{t1}, {WS_EXP - WS_DESC}
    v_and_b32 v25, 0x3f0, v1
    s_mov_b64 exec, 0xffff
    buffer_store_dwordx4 v[20:23], v25, s[{srd_}:{srd_+3}], s{t0} offen sc1
    s_mov_b64 exec, -1
    s_bitcmp0_b32 s2, 0
    s_cbranch_scc1 A_ops2_done
    s_mov_b64 exec, 1
    buffer_store_dword v24, v25, s[{srd_}:{srd_+3}], s{t1} offen sc1
    s_mov_b64 exec, -1
    A_ops2_done:
    """)

def gen_part(name, opt):
    a = Asm()
    stamps = opt.get("stamps", False)
    ldpol = opt.get("ldpol", ""); stpol = opt.get("stpol", ""); angpol = opt.get("angpol", ldpol)
    SO = opt.get("so", SO_DEF)
    ILV = opt.get("ilv", 0)
    HS = opt.get("hs", 36)
    WIN = opt.get("win", 2)
    AWIN = opt.get("awin", 4)
    HOLD = opt.get("hold", 6)
    NG = 12
    NL = TILE - NG * 4096
    R0 = 30
    R = lambda g, j: R0 + 8 * g + j
    RL = R0 + 8 * NG
    S_IN, S_OUT, S_ANG, S_REC, S_DSC = 8, 12, 16, 20, 24
    S_G16 = 32
    S_G8 = 48
    S_LAST = 62
    S_WAVE = 64; S_DIV = 65; S_NEG = 66; S_HI = 67; S_LO = 68; S_T0 = 69; S_T1 = 70; S_NB = 71
    S_HP = 45; S_TOT = 46; S_XCC = 47
    S_ST = 72
    LAST = f"s[{S_LAST}:{S_LAST+1}]"
    nst = [0]
    def stamp():
        if stamps and nst[0] < 11:
            a(f"s_memrealtime s[{S_ST+2*nst[0]}:{S_ST+2*nst[0]+1}]"); nst[0] += 1
    a(f"""
    s_cmp_ge_u32 s2, {NT}
    s_cbranch_scc1 {"B_end" if opt.get("fused") else "A_end"}
    s_load_dwordx4 s[4:7], s[0:1], 8
    s_load_dwordx2 s[28:29], s[0:1], 32
    s_load_dwordx2 s[30:31], s[0:1], 104
    s_load_dwordx2 s[94:95], s[0:1], 0
    s_load_dwordx2 s[96:97], s[0:1], 24
    s_load_dwordx8 s[8:15], s[0:1], 56
    s_load_dwordx2 s[98:99], s[0:1], 40
    """)
    stamp()
    if opt.get("touch") in (1, 2): code_touch(a, "A", S_REC, 6, 6, "A_pc0", "B_codeend" if opt["touch"] == 2 else "A_end", "v_lshlrev_b32 v6, 7, v0")
    for g in range(NG + 1):
        if ILV and g == NG:
            a(f"s_mul_i32 s{S_G8+g}, s2, {2*NL - 8192}\ns_add_u32 s{S_G8+g}, s{S_G8+g}, {g*8192*NT}\ns_lshl_b32 s{S_G16+g}, s{S_G8+g}, 1")
        else:
            a(f"s_mov_b32 s{S_G16+g}, {g*16384*(NT if ILV else 1)}\ns_mov_b32 s{S_G8+g}, {g*8192*(NT if ILV else 1)}")
    a(f"""
    v_lshlrev_b32 v1, 4, v0
    v_lshlrev_b32 v2, 3, v0
    v_lshlrev_b32 v3, 5, v0
    v_lshrrev_b32 v4, 2, v0
    v_mad_u32_u24 v3, v4, {4*HS - 128}, v3
    v_lshrrev_b32 v4, 6, v0
    v_cmp_gt_u32 vcc, {NL}, v0
    s_mov_b64 {LAST}, vcc
    v_readfirstlane_b32 s{S_WAVE}, v4
    s_mov_b32 s{S_DIV}, {(2**32 + 2*EB - 1)//(2*EB)}
    s_mov_b32 s{S_NEG}, {-2*EB}
    s_mov_b32 s{S_HI}, 0xffff0000
    s_mov_b32 s{S_LO}, 0xffff
    s_getreg_b32 s{S_XCC}, hwreg(HW_REG_XCC_ID, 0, 4)
    s_mul_i32 s{S_T0}, s2, {16384 if ILV else TILE*4}
    s_mul_i32 s{S_T1}, s2, {8192 if ILV else TILE*2}
    s_add_u32 s{S_TOT}, s{S_G16+NG}, {4*NL}
    s_add_u32 s{S_NB}, s{S_G8+NG}, {2*NL}
    v_lshlrev_b32 v4, 2, v0
    v_lshlrev_b32 v29, 1, v0
    s_waitcnt lgkmcnt(0)
    """)
    if opt.get("pst"): stamp()
    a('; workgroups 0..7, wave 15: load one 8x16 weight slice (and a sample of m); finished after the first group')
    operands_load(a, S_WAVE, R(8, 0))
    srd(a, S_IN, 4, 5, f"s{S_T0}", f"s{S_TOT}")
    srd(a, S_OUT, 6, 7, f"s{S_T0}", f"s{S_TOT}")
    stream = [("il",), ("ol",)]
    for g in range(NG): stream += [("i", g), ("o", g)]
    NIDX = len(stream)
    stream += [("al",)] + [("a", g) for g in range(NG)]
    issued = [0]
    def issue():
        x = stream[issued[0]]; issued[0] += 1
        if x[0] == "il": a(f"buffer_load_dword v{RL}, v4, s[{S_IN}:{S_IN+3}], s{S_G16+NG} offen {ldpol}")
        if x[0] == "ol": a(f"buffer_load_dword v{RL+1}, v4, s[{S_OUT}:{S_OUT+3}], s{S_G16+NG} offen {ldpol}")
        if x[0] == "i": a(f"buffer_load_dwordx4 v[{R(x[1],0)}:{R(x[1],3)}], v1, s[{S_IN}:{S_IN+3}], s{S_G16+x[1]} offen {ldpol}")
        if x[0] == "o": a(f"buffer_load_dwordx4 v[{R(x[1],4)}:{R(x[1],7)}], v1, s[{S_OUT}:{S_OUT+3}], s{S_G16+x[1]} offen {ldpol}")
        if x[0] == "al": a(f"buffer_load_ushort v28, v29, s[{S_ANG}:{S_ANG+3}], s{S_G8+NG} offen {angpol}")
        if x[0] == "a": a(f"buffer_load_dwordx2 v[{R(x[1],6)}:{R(x[1],7)}], v2, s[{S_ANG}:{S_ANG+3}], s{S_G8+x[1]} offen {angpol}")
    extra = [0]
    stores_after = []
    def wait_for(pos, lg=None):
        n = issued[0] - 1 - pos + sum(1 for p in stores_after if p > pos)
        a(f"s_waitcnt vmcnt({n})" + (f" lgkmcnt({lg})" if lg is not None else ""))
    a('; a thread holds 12 groups of 4 triplets + 1 single in v30..v127; two loads in flight per wave')
    for _ in range(min(NIDX, WIN + 2)): issue()
    srd(a, S_ANG, 28, 29, f"s{S_T1}", f"s{S_NB}")
    OLV = opt.get("olv", 0)
    a(f"s_mul_i32 s{S_T0}, s2, {16384 if OLV else TS}")
    srd(a, S_REC, 30, 31, f"s{S_T0}", TS)
    srd(a, S_DSC, 30, 31, WS_DESC, WS_EXP + 16 - WS_DESC)
    a(f"""
    s_mul_i32 s{S_T0}, s2, 10923
    s_lshr_b32 s{S_T0}, s{S_T0}, 16
    s_mul_i32 s{S_T0}, s{S_T0}, 6
    s_sub_u32 s{S_HP}, s2, s{S_T0}
    """)
    a("""
    v_mov_b32 v8, 0
    v_mov_b32 v9, 0
    v_mov_b32 v10, 0
    v_mov_b32 v11, 0
    v_mov_b32 v5, 1
    ds_write_b128 v3, v[8:11]
    ds_write_b128 v3, v[8:11] offset:16
    s_waitcnt lgkmcnt(0)
    s_barrier
    """)
    if opt.get("pst"): stamp()
    wait_for(1)
    if opt.get("pst"): stamp()
    a(f"""
    v_mul_hi_u32 v8, v{RL+1}, s{S_DIV}
    v_mad_i32_i24 v{RL+1}, v8, s{S_NEG}, v{RL+1}
    v_subrev_u32 v9, {SO}, v{RL+1}
    v_alignbit_b32 v8, v8, v9, 31
    v_min_u32 v{RL+1}, v{RL+1}, v9
    v_lshl_or_b32 v{RL}, v{RL+1}, 20, v{RL}
    v_bfe_u32 v9, v{RL}, 15, 5
    v_mad_u32_u24 v8, v8, {HS}, v9
    v_lshlrev_b32 v{RL+1}, 2, v8
    s_mov_b64 exec, {LAST}
    ds_add_u32 v{RL+1}, v5
    s_mov_b64 exec, -1
    """)
    done = [-1]
    def top_up(pos):
        while issued[0] < len(stream):
            x = stream[issued[0]]
            infl = sum(2 if stream[k][0] in "io" else 1 for k in range(pos + 1, issued[0]))
            if x[0] in ("i", "o"):
                if infl + 2 > 2 * WIN: break
            else:
                if infl + 1 > AWIN: break
                if x[0] == "a" and x[1] > done[0]: break
            issue()
    for g in range(NG):
        r = [R(g, j) for j in range(8)]
        pat = opt.get("pat", "")
        c = pat[g % len(pat)] if pat else "n"
        shape = opt.get("shape")
        def strict():
            if shape is None: a("s_waitcnt vmcnt(0)")
            else:
                lab = f"A_sh{len(a.L)}"
                a(f"s_bitcmp{1-shape}_b32 s{S_XCC}, 0\ns_cbranch_scc1 {lab}\ns_waitcnt vmcnt(0)\n{lab}:")
        if issued[0] < len(stream) and WIN < 20:
            wait_for(2 + 2 * g)
            if c in "ps" and g < NG - 1: strict()
            top_up(2 + 2 * g)
        wait_for(3 + 2 * g)
        if c == "s" and g < NG - 1: strict()
        top_up(3 + 2 * g)
        t = 8 + 4 * (g & 1)
        for j in range(4): a(f"v_mul_hi_u32 v{t+j}, v{r[4+j]}, s{S_DIV}")
        for j in range(4): a(f"v_mad_i32_i24 v{r[4+j]}, v{t+j}, s{S_NEG}, v{r[4+j]}")
        for j in range(4): a(f"v_subrev_u32 v{16+j}, {SO}, v{r[4+j]}")
        for j in range(4): a(f"v_alignbit_b32 v{t+j}, v{t+j}, v{16+j}, 31")
        for j in range(4): a(f"v_min_u32 v{r[4+j]}, v{r[4+j]}, v{16+j}")
        a(f"""
        v_lshl_or_b32 v{r[0]}, v{r[4]}, 20, v{r[0]}
        v_lshl_or_b32 v{r[4]}, v{r[6]}, 20, v{r[2]}
        v_lshl_or_b32 v{r[2]}, v{r[5]}, 20, v{r[1]}
        v_lshl_or_b32 v{r[5]}, v{r[7]}, 20, v{r[3]}
        """)
        done[0] = g
        pk = [r[0], r[2], r[4], r[5]]
        for j in range(4): a(f"v_bfe_u32 v{16+j}, v{pk[j]}, 15, 5")
        for j in range(4): a(f"v_mad_u32_u24 v{t+j}, v{t+j}, {HS}, v{16+j}")
        for j in range(4): a(f"v_lshlrev_b32 v{t+j}, 2, v{t+j}\nds_add_u32 v{t+j}, v5")
        a(f"v_lshl_or_b32 v{r[1]}, v{t+1}, 16, v{t}\nv_lshl_or_b32 v{r[3]}, v{t+3}, 16, v{t+2}")
        if g == 0:
            assert WIN <= 4
            operands_store(a, S_WAVE, R(8, 0), S_DSC, S_T0, S_T1, S_NB)
    a("s_waitcnt lgkmcnt(0)\ns_barrier")
    stamp()
    KS = opt.get("ks", (0, 0, 0))
    def more(n):
        for _ in range(n):
            if issued[0] < len(stream): issue()
    a("; scan of the counters; every bucket's run is padded to whole 20-record lines, the hole sits mid-run")
    a(f"""
    ds_read_b128 v[8:11], v3
    ds_read_b128 v[12:15], v3 offset:16
    """)
    more(KS[0])
    a(f"""
    v_and_b32 v6, 3, v0
    s_lshl_b32 s{S_T0}, s{S_WAVE}, 2
    s_add_u32 s{S_T0}, s{S_T0}, 40960
    v_mov_b32 v19, s{S_T0}
    v_and_b32 v17, 15, v0
    v_lshlrev_b32 v17, 2, v17
    s_waitcnt lgkmcnt(0)
    v_add_u32 v9, v8, v9
    v_add_u32 v10, v9, v10
    v_add_u32 v11, v10, v11
    v_add_u32 v12, v11, v12
    v_add_u32 v13, v12, v13
    v_add_u32 v14, v13, v14
    v_add_u32 v15, v14, v15
    s_lshr_b32 s{S_T0}, s{S_HP}, 1
    v_cmp_eq_u32 vcc, s{S_T0}, v6
    v_add_u32_dpp v7, v15, v15 quad_perm:[1,0,3,2] row_mask:0xf bank_mask:0xf
    s_mov_b32 s{S_T1}, 52429
    s_bitcmp1_b32 s{S_HP}, 0
    v_add_u32_dpp v7, v7, v7 quad_perm:[2,3,0,1] row_mask:0xf bank_mask:0xf
    v_add_u32 v20, {RPL-1}, v7
    v_mul_u32_u24 v20, s{S_T1}, v20
    v_lshrrev_b32 v20, 20, v20
    v_mul_u32_u24 v21, {RPL}, v20
    v_sub_u32 v7, v21, v7
    v_cndmask_b32 v21, 0, v7, vcc
    v_lshl_or_b32 v7, v20, 16, v7
    v_mov_b32 v20, v15
    s_cbranch_scc1 A_hole7
    v_mov_b32 v20, v11
    v_add_u32 v11, v11, v21
    v_add_u32 v12, v12, v21
    v_add_u32 v13, v13, v21
    v_add_u32 v14, v14, v21
    A_hole7:
    v_add_u32 v15, v15, v21
    v_mov_b32 v18, v15
    """)
    wave_scan(a, 18)
    a(f"""
    s_mov_b32 exec_lo, 0
    s_brev_b32 exec_hi, 1
    ds_write_b32 v19, v18
    s_mov_b64 exec, -1
    v_sub_u32 v18, v18, v15
    s_waitcnt lgkmcnt(0)
    s_barrier
    ds_read_b32 v19, v17 offset:40960
    """)
    more(KS[1])
    a(f"""
    s_waitcnt lgkmcnt(0)
    v_mov_b32 v17, v19
    """)
    for sh in (1, 2, 4, 8):
        a(f"s_nop 1\nv_add_u32_dpp v17, v17, v17 row_shr:{sh} row_mask:0xf bank_mask:0xf bound_ctrl:1")
    a(f"""
    v_sub_u32 v19, v17, v19
    v_readlane_b32 s{S_TOT}, v17, 15
    v_readlane_b32 s{S_T0}, v19, s{S_WAVE}
    s_nop 1
    """)
    a(f"v_add_u32 v4, s{S_T0}, v18")
    for i in range(7, -1, -1): a(f"v_add_u32 v{9+i}, v4, v{8+i}")
    a(f"""
    v_mov_b32 v8, v4
    ds_write_b128 v3, v[12:15] offset:16
    ds_write_b128 v3, v[8:11]
    v_add_u32 v19, v4, v20
    v_cndmask_b32 v19, 0, v19, vcc
    v_mov_b32 v3, {(RPL - 1 - opt.get('pivot', PIVOT)) * 52429}
    s_mul_i32 s{S_TOT}, s{S_TOT}, 52429
    s_lshr_b32 s{S_TOT}, s{S_TOT}, 20
    s_lshl_b32 s{S_REC+2}, s{S_TOT}, 7
    """)
    if OLV:
        a(f"s_lshr_b32 s{S_NB}, s{S_TOT}, 7\ns_mul_i32 s{S_NB}, s{S_NB}, {16384*(NT-1)}\ns_add_u32 s{S_REC+2}, s{S_REC+2}, s{S_NB}")
    tset = lambda g: [20, 24, 8][g % 3]
    def p2_pre(g):
        r = [R(g, j) for j in range(8)]; t = tset(g)
        a(f"""
        v_and_b32 v{t}, s{S_LO}, v{r[1]}
        v_lshrrev_b32 v{t+1}, 16, v{r[1]}
        v_and_b32 v{t+2}, s{S_LO}, v{r[3]}
        v_lshrrev_b32 v{t+3}, 16, v{r[3]}
        """)
    def p2_ds(g):
        t = tset(g)
        for j in range(4): a(f"ds_add_rtn_u32 v{t+j}, v{t+j}, v5")
    def p2_fin(g):
        r = [R(g, j) for j in range(8)]; t = tset(g)
        a(f"""
        v_lshl_or_b32 v{r[1]}, v{r[6]}, 16, v{t}
        v_and_or_b32 v{r[3]}, v{r[6]}, s{S_HI}, v{t+1}
        v_mov_b32 v{r[6]}, v{r[5]}
        v_lshl_or_b32 v{r[5]}, v{r[7]}, 16, v{t+2}
        v_and_or_b32 v{r[7]}, v{r[7]}, s{S_HI}, v{t+3}
        """)
    a('; pass 2: position of every triplet (cursor per bin); the angles arrive meanwhile')
    p2_pre(0); p2_pre(1)
    a(f"""
    s_waitcnt lgkmcnt(0)
    s_barrier
    """)
    stamp()
    more(opt.get("kpre", 0))
    a(f"""
    s_not_b64 exec, {LAST}
    v_mov_b32 v{RL+1}, 0xffff
    s_mov_b64 exec, {LAST}
    ds_add_rtn_u32 v{RL+1}, v{RL+1}, v5
    s_mov_b64 exec, -1
    """)
    p2_ds(0); p2_ds(1)
    more(KS[2])
    a('; descriptor of the run: first line | pad << 20, hole start | lines << 16, one schedule bit per line')
    for i in range(9): a(f"v_mad_u32_u24 v{8+i}, v{8+i}, s{S_T1}, v3\nv_lshrrev_b32 v{8+i}, 20, v{8+i}")
    for i in range(7, -1, -1): a(f"v_sub_u32 v{9+i}, v{9+i}, v{8+i}")
    for i in range(8): a(f"v_min_u32 v{9+i}, 2, v{9+i}\nv_bfm_b32 v{9+i}, v{9+i}, {i}")
    a(f"""
    v_or3_b32 v18, v9, v10, v11
    v_or3_b32 v18, v18, v12, v13
    v_or3_b32 v18, v18, v14, v15
    v_or_b32 v18, v18, v16
    v_lshlrev_b32 v6, 3, v6
    v_lshlrev_b32 v18, v6, v18
    s_mul_i32 s{S_T0}, s2, {4096 if OLV else TL}
    v_or_b32_dpp v19, v19, v19 quad_perm:[1,0,3,2] row_mask:0xf bank_mask:0xf
    v_or_b32_dpp v18, v18, v18 quad_perm:[1,0,3,2] row_mask:0xf bank_mask:0xf
    v_add_u32 v16, s{S_T0}, v8
    v_or_b32_dpp v19, v19, v19 quad_perm:[2,3,0,1] row_mask:0xf bank_mask:0xf
    v_or_b32_dpp v18, v18, v18 quad_perm:[2,3,0,1] row_mask:0xf bank_mask:0xf
    v_and_b32 v12, 31, v7
    v_lshl_or_b32 v16, v12, 20, v16
    v_sub_u32 v19, v19, v4
    v_and_or_b32 v17, v7, s{S_HI}, v19
    v_lshrrev_b32 v12, 16, v7
    v_bcnt_u32_b32 v13, v18, 0
    v_sub_u32 v12, v12, v13
    v_min_u32 v12, 6, v12
    v_bfm_b32 v12, v12, 26
    v_or_b32 v18, v18, v12
    """)
    APOS = NIDX + 1; JIT = opt.get('jit', 0)
    for g in range(NG):
        if g + 2 < NG:
            p2_pre(g + 2); p2_ds(g + 2); n = 8
        else:
            n = 4 * (NG - 1 - g)
        if JIT:
            more(opt.get("kg", 1))
            a(f"s_waitcnt lgkmcnt({n})")
            r = [R(g, j) for j in range(8)]; t = tset(g)
            a(f"v_lshl_or_b32 v{r[1]}, v{t+1}, 16, v{t}\nv_lshl_or_b32 v{r[3]}, v{t+3}, 16, v{t+2}")
            continue
        while issued[0] <= APOS + g: issue()
        if "ks" in opt: more(opt.get("kg", 1)); wait_for(APOS + g, n)
        else: wait_for(APOS + g, n); top_up(APOS + g)
        if g == 0: a(f"v_lshl_or_b32 v{RL+1}, v28, 16, v{RL+1}")
        p2_fin(g)
    def merge(g):
        r = [R(g, j) for j in range(8)]
        wait_for(APOS + g)
        a(f"""
        v_perm_b32 v8, v{r[6]}, v{r[1]}, s{S_DIV}
        v_perm_b32 v{r[1]}, v{r[6]}, v{r[1]}, s{S_NEG}
        v_mov_b32 v{r[6]}, v{r[5]}
        v_perm_b32 v{r[5]}, v{r[7]}, v{r[3]}, s{S_NEG}
        v_perm_b32 v{r[7]}, v{r[7]}, v{r[3]}, s{S_DIV}
        v_mov_b32 v{r[3]}, v8
        """)
    assert issued[0] == len(stream)
    a(f"""
    v_and_b32 v15, 0x300, v0
    v_bfe_u32 v14, v0, 2, 1
    v_lshl_or_b32 v15, v14, 7, v15
    v_bfe_u32 v14, v0, 3, 5
    v_lshl_or_b32 v15, v14, 2, v15
    v_lshlrev_b32 v15, 2, v15
    s_lshl_b32 s{S_T0}, s2, 12
    s_mov_b32 exec_lo, 0x11111111
    s_mov_b32 exec_hi, 0x11111111
    buffer_store_dwordx4 v[16:19], v15, s[{S_DSC}:{S_DSC+3}], s{S_T0} offen {opt.get("dpol", "")}
    s_mov_b64 exec, -1
    """)
    WL = opt.get("warmlines", 0) if opt.get("warm") else 0
    WN = opt.get("warmn", 4)
    WPL = -(-WL // (16 * WN))
    def warm_setup():
        if WL >= 782:
            a(f"s_mul_i32 s{S_T0}, s2, {EB*32}\ns_and_b32 s{S_T0}, s{S_T0}, -128")
            srd(a, S_IN, 94, 95, f"s{S_T0}", EB * 32)
        else:
            a(f"s_mul_i32 s{S_T0}, s2, {WL*128}")
            srd(a, S_IN, 94, 95, f"s{S_T0}", WL * 128)
        if opt.get("warmdist"):
            a(f"s_mul_i32 s{S_T0}, s2, {EB*2}\nv_lshlrev_b32 v7, 7, v0")
            srd(a, S_OUT, 96, 97, f"s{S_T0}", EB * 2)
            a(f"buffer_load_ushort v29, v7, s[{S_OUT}:{S_OUT+3}], 0 offen"); stores_after.append(10**6)
        a(f"""
        v_and_b32 v7, 63, v0
        s_mul_i32 s{S_T0}, s{S_WAVE}, {WPL}
        v_cmp_gt_u32 vcc, {WPL}, v7
        v_add_u32 v7, s{S_T0}, v7
        v_lshlrev_b32 v7, 7, v7
        v_cndmask_b32 v7, -1, v7, vcc
        """)
    def warm(i):
        stores_after.append(10**6)
        a(f"s_mov_b32 s{S_T0}, {i*16*WPL*128}\nbuffer_load_dword v0, v7, s[{S_IN}:{S_IN+3}], s{S_T0} offen {opt.get('warmpol','')}")
    a(f"""
    v_lshrrev_b32 v2, 3, v0
    v_mul_u32_u24 v2, {RPL*8}, v2
    v_bfe_u32 v7, v0, 1, 2
    v_lshl_add_u32 v2, v7, 3, v2
    v_and_b32 v7, 1, v0
    v_lshl_add_u32 v3, v7, 2, v2
    v_lshl_add_u32 v2, v7, 6, v2
    s_mov_b32 s{S_DIV}, 0x07060302
    s_mov_b32 s{S_NEG}, 0x05040100
    """)
    a('; first part of m and dist -> last-level cache while the memory is idle')
    if WL: warm_setup()
    a("s_barrier")
    stamp()
    NPASS = 3
    buf = lambda i: 6 + 4 * (i % 6)
    held = []
    def store(k, i):
        b = buf(i)
        a(f"s_mov_b32 s{S_T0}, {(k*131072 + i*16384) * (NT if OLV else 1)}")
        a(f"buffer_store_dwordx4 v[{b}:{b+3}], v1, s[{S_REC}:{S_REC+3}], s{S_T0} offen {stpol if isinstance(stpol, str) else stpol[k]}")
    abase = [0]
    for k in range(NPASS):
        a('; scatter the records of one 1024-line window into the LDS (the others fall outside it and are dropped)')
        a(f"s_mov_b32 s{S_NB}, {(-k * LDS) & 0xffffffff}")
        recs = [RL] + [R(g, 2 * j) for g in range(NG) for j in range(4)]
        gap = len(recs) // max(len(held), 1)
        for n_, r in enumerate(recs):
            if held and n_ % gap == 0: store(*held.pop(0))
            w0 = opt.get("warm0", 0); ws_ = (len(recs) - w0) // WN
            if k == 0 and WL and n_ >= w0 and (n_ - w0) % ws_ == 0 and (n_ - w0) // ws_ < WN: warm((n_ - w0) // ws_)
            if k == 0 and JIT:
                if n_ == 0: wait_for(NIDX); a(f"v_lshl_or_b32 v{RL+1}, v28, 16, v{RL+1}")
                if n_ % 4 == 1: merge(n_ // 4)
            t = 4 + n_ % 2
            a(f"v_mad_u32_u16 v{t}, v{r+1}, 8, s{S_NB}\nds_write_b64 v{t}, v[{r}:{r+1}]")
        assert not held
        a(f"s_waitcnt lgkmcnt(0)" + (f" vmcnt({WN})" if k == 0 and WL and opt.get("warmdist") else "") + "\ns_barrier")
        stamp()
        if k == NPASS - 1 and opt.get("touch") == 3: code_touch(a, "A", S_IN, 30, 30, "A_end", "B_codeend", "v_lshlrev_b32 v30, 3, v1")
        nstep = 8 if k < NPASS - 1 else 5
        now = nstep - HOLD if k < NPASS - 1 else nstep
        def rd(i):
            b = buf(i)
            if i % 3 == 0 and i * 20480 != abase[0]:
                d = (i * 20480 - abase[0]) & 0xffffffff
                a(f"v_add_u32 v2, {d}, v2\nv_add_u32 v3, {d}, v3"); abase[0] = i * 20480
            o = (i % 3) * 20480
            a(f"ds_read_b64 v[{b}:{b+1}], v2 offset:{o}\nds_read_b64 v[{b+2}:{b+3}], v2 offset:{o+32}\nds_read_b32 v{4 + i % 2}, v3 offset:{o+128}")
        rd(0)
        for i in range(nstep):
            left = 0
            if i + 1 < nstep: rd(i + 1); left = 1
            b = buf(i)
            a(f"s_waitcnt lgkmcnt({3*left})")
            a(f"v_perm_b32 v{b+1}, v{b+3}, v{b+1}, s{S_DIV}\nv_mov_b32 v{b+3}, v{4 + i % 2}")
            if i < now: store(k, i)
            else: held.append((k, i))
        if k < NPASS - 1:
            a("s_barrier")
        else:
            assert TL <= 2048 + 6 * 128
            a(f"s_cmp_le_u32 s{S_TOT}, {2048 + 5*128}\ns_cbranch_scc1 A_last")
            rd(5); b = buf(5)
            a(f"s_waitcnt lgkmcnt(0)\nv_perm_b32 v{b+1}, v{b+3}, v{b+1}, s{S_DIV}\nv_mov_b32 v{b+3}, v5")
            store(k, 5)
            a("A_last:")
        stamp()
    def warm_end():
        w2 = opt["warm2"]
        par = opt.get("warm2par")
        if par is not None:
            a(f"s_bitcmp{1-par}_b32 s2, 0\ns_cbranch_scc1 A_nowarm2\ns_lshr_b32 s{S_T0}, s2, 1\ns_mul_i32 s{S_T0}, s{S_T0}, {2*w2*128}")
            w2 *= 2
        else:
            a(f"s_mul_i32 s{S_T0}, s2, {w2*128}")
        a(f"s_add_u32 s{S_T0}, s{S_T0}, {WL*NT*128}")
        srd(a, S_IN, 94, 95, 0, E * 32)
        a(f"""
        v_lshlrev_b32 v30, 3, v1
        v_cmp_gt_u32 vcc, {w2*128}, v30
        v_add_u32 v30, s{S_T0}, v30
        s_nop 0
        v_cndmask_b32 v30, -1, v30, vcc
        buffer_load_dword v31, v30, s[{S_IN}:{S_IN+3}], 0 offen
        A_nowarm2:
        """)
    if opt.get("warm2") and not stamps: warm_end()
    if stamps:
        a(f"s_waitcnt vmcnt(0)")
        stamp()
        a(f"""
        s_waitcnt lgkmcnt(0)
        s_lshl_b32 s{S_T0}, s2, 10
        s_add_u32 s{S_T0}, s{S_T0}, {WS_STAMP}
        """)
        srd(a, S_DSC, 30, 31, f"s{S_T0}", 1024)
        a(f"s_lshl_b32 s{S_T1}, s{S_WAVE}, 6\nv_mov_b32 v9, s{S_T1}\ns_mov_b64 exec, 1")
        for i in range(nst[0]):
            a(f"v_mov_b32 v8, s{S_ST+2*i}\nbuffer_store_dword v8, v9, s[{S_DSC}:{S_DSC+3}], 0 offen offset:{4*i}\ns_nop 1")
        a(f"s_getreg_b32 s{S_T0}, hwreg(HW_REG_XCC_ID, 0, 4)\nv_mov_b32 v8, s{S_T0}\nbuffer_store_dword v8, v9, s[{S_DSC}:{S_DSC+3}], 0 offen offset:60")
        if opt.get("warm2"):
            a("s_mov_b64 exec, -1"); warm_end()
    if opt.get("fused"):
        a("s_mov_b64 exec, -1")
        return head(name) + a.text(), "", nst[0]
    a("A_end:\ns_endpgm")
    return head(name) + a.text(), desc(name, 128), nst[0]
```

```python
from gen import *
import re
L_CTR = 0
L_FLAG = 4
L_INFO = 8
L_AB = 16
L_C = L_AB + 2048
L_LIST = L_C + 1024
JMAX = 11; CAP = NT * JMAX
L_OPS = L_LIST + 2 * (CAP + 64)
SENT = 0x7c017c01
RSTEP = 12; RMAX = 24

def gen_main(name, opt):
    a = Asm()
    NW = 16; NTH = NW * 64
    NWK = opt.get("nwk", 12)
    stamps = opt.get("stamps", False)
    recpol = opt.get("recpol", ""); gpol = opt.get("gpol", ""); outpol = opt.get("outpol", "")
    prio = opt.get("prio", True)
    NH = NW - NWK
    SO = opt.get("so", SO_DEF); SMAX = max(SO, 2 * EB - SO)
    L_ROW = LDS - 48 * SMAX
    assert L_ROW >= L_OPS + 2048 + 16 and L_OPS % 16 == 0 and SO % 2 == 0
    S_ROW0, S_NROW = 4, 5
    SPLIT = opt.get("split", 0)
    S_SPL, S_NV, S_CNT = 42, 43, 44
    SPF = opt.get("spf")
    S_M, S_REC, S_X, S_Y = 8, 12, 16, 20
    S_CEN = 24
    S_WAVE, S_NCH, S_TK, S_JB, S_ROUND, S_NR, S_FAST, S_T0, S_T1, S_T2, S_BASE, S_BIT, S_LOW, S_ANY = range(32, 46)
    S_PM, S_LM, S_RET, S_DRN, S_SAVE = 46, 48, 50, 52, 54
    S_PM_, S_LM_, S_RET_, S_DRN_, S_SAVE_ = (f"s[{x}:{x+1}]" for x in (S_PM, S_LM, S_RET, S_DRN, S_SAVE))
    P_M, P_DIST, P_CEN, P_OUT, P_WS = 56, 58, 60, 62, 64
    S_PF, S_TRY = 66, 67
    S_BAD = 86
    S_M20, S_HI = 6, 7
    S_127 = S_CNT; assert not (SPLIT and opt.get('olv'))
    S_CRAW = 68
    S_ST = 72
    S_EV = 100; S_DUM = 94; S_Z = 96
    IM = 1
    WG = [2, 6, 10]; WD = [14, 18]
    IX = 22; RP = 24; RB = 26; PK = 34; AN = 39; INV = 44; F0 = 45
    GA = 48; RF = 56; DM = 60; DG = 76; AC = 92; TT = 100; SB = AC; PE = 104; PA = 120; LK = 121; SE = 122
    C0 = TT; C2 = 123; LANE = 125; T2 = 126; T3 = 127
    NV = 128
    nst = [0]
    def stamp():
        if stamps:
            a(f"s_memrealtime s[{S_ST+2*nst[0]}:{S_ST+2*nst[0]+1}]"); nst[0] += 1
    v4 = lambda r: f"v[{r}:{r+3}]"
    v2 = lambda r: f"v[{r}:{r+1}]"
    v16 = lambda r: f"v[{r}:{r+15}]"

    def f_ticket():
        if SPLIT: a(f"s_cmp_eq_u32 s{S_CNT}, 5\ns_cselect_b64 exec, -1, 0\nds_append v{F0} offset:{L_CTR}\ns_mov_b64 exec, -1")
        else: a(f"ds_append v{F0} offset:{L_CTR}")
    def f_entry_pre():
        a(f"v_readfirstlane_b32 s{S_TK}, v{F0}")
        if SPLIT:
            a(f"""
            s_sub_u32 s{S_T0}, s{S_TK}, s{S_SPL}
            s_cselect_b32 s{S_T0}, 0, s{S_T0}
            s_lshr_b32 s{S_T0}, s{S_T0}, 4
            s_lshr_b32 s{S_T0}, 0x66220000, s{S_T0}
            s_and_b32 s{S_T0}, s{S_T0}, 15
            s_lshl_b32 s{S_T0}, s{S_T0}, 6
            s_sub_u32 s{S_T0}, s{S_TK}, s{S_T0}
            s_cmp_lt_u32 s{S_TK}, s{S_NV}
            s_cselect_b32 s{S_T0}, s{S_T0}, s{S_NCH}
            """)
        else: a(f"s_min_u32 s{S_T0}, s{S_TK}, s{S_NCH}")
        a(f"""
        v_and_or_b32 v{F0}, v0, 60, s{S_T0}
        v_lshrrev_b32 v{F0}, 1, v{F0}
        """)
    def f_entry(): a(f"ds_read_i16 v{F0}, v{F0} offset:{L_LIST}")
    def f_desc_pre(): a(f"v_and_b32 v{F0+1}, 0xff, v{F0}\nv_lshlrev_b32 v{F0+1}, 3, v{F0+1}")
    def f_desc(): a(f"ds_read_b64 {v2(F0+1)}, v{F0+1} offset:{L_AB}")
    def f_load():
        if opt.get("olv"):
            a(f"""
            v_bfe_u32 v{F0}, v{F0}, 8, 16
            v_and_b32 v{RP}, 0xfff, v{F0+1}
            v_add_u32 v{F0}, s{S_JB}, v{F0}
            v_bfe_u32 v{RB}, v{F0+1}, 5, 15
            v_add_u32 v{RP}, v{RP}, v{F0}
            v_lshrrev_b32 v{RB+1}, 7, v{RP}
            v_bfi_b32 v{RP}, s{S_127}, v{RP}, v{RB}
            v_lshl_or_b32 v{RP}, v{RB+1}, 15, v{RP}
            """)
        else:
            a(f"""
            v_bfe_u32 v{F0}, v{F0}, 8, 22
            v_and_b32 v{RP}, 0xfffff, v{F0+1}
            v_add_u32 v{F0}, s{S_JB}, v{F0}
            v_add_u32 v{RP}, v{RP}, v{F0}
            """)
        a(f"""
        buffer_load_dwordx4 {v4(RB)}, {v2(RP)}, s[{S_REC}:{S_REC+3}], 0 idxen offen {recpol}
        buffer_load_dwordx4 {v4(RB+4)}, {v2(RP)}, s[{S_REC}:{S_REC+3}], 0 idxen offen offset:16 {opt.get('recpol2', recpol)}
        """)
    def f_mask():
        a(f"""
        v_lshrrev_b32 v{INV}, 16, v{F0+2}
        v_and_b32 v{F0+2}, 0xffff, v{F0+2}
        v_lshrrev_b32 v{F0+1}, 20, v{F0+1}
        v_sub_u32 v{INV}, v{F0}, v{INV}
        v_mad_i32_i24 v{F0+2}, v{F0}, s{S_M20}, v{F0+2}
        v_ashrrev_i32 v{INV}, 31, v{INV}
        v_add_u32 v{F0+1}, v{F0+1}, v{F0+2}
        v_med3_i32 v{F0+2}, v{F0+2}, 0, {RPL}
        v_med3_i32 v{F0+1}, v{F0+1}, 0, {RPL}
        v_sub_u32 v{F0+1}, v{F0+1}, v{F0+2}
        v_bfm_b32 v{F0+1}, v{F0+1}, v{F0+2}
        v_and_b32 v{F0}, 3, v0
        v_bfi_b32 v{F0+1}, v{INV}, v{F0+1}, -1
        v_lshrrev_b32 v{INV}, v{F0}, v{F0+1}
        """)
    RAWPK = [RB, RB + 2, RB + 4, RB + 6, RB + 3]
    def decode(i):
        src = [RB + 1, RB + 1, RB + 5, RB + 5, RB + 7][i]
        a(f"v_bfe_i32 v{PK+i}, v{INV}, {4*i}, 1")
        if i in (0, 2): a(f"v_lshlrev_b32 v{AN+i}, 16, v{src}\nv_bfi_b32 v{AN+i}, v{PK+i}, 0, v{AN+i}")
        else: a(f"v_bitop3_b32 v{AN+i}, v{src}, s{S_HI}, v{PK+i} bitop3:0x40")
        a(f"v_or_b32 v{PK+i}, v{PK+i}, v{RAWPK[i]}")
    DPP = "row_mask:0xf bank_mask:0xf"
    def gathers(n, G=GA):
        a(f"""
        v_and_b32_dpp v{IX}, v{PK+n}, v{IM} quad_perm:[0,0,2,2] {DPP}
        buffer_load_dwordx4 {v4(G)}, {v2(IX)}, s[{S_M}:{S_M+3}], 0 idxen offen {gpol}
        v_and_b32_dpp v{IX}, v{PK+n}, v{IM} quad_perm:[1,1,3,3] {DPP}
        buffer_load_dwordx4 {v4(G+4)}, {v2(IX)}, s[{S_M}:{S_M+3}], 0 idxen offen {gpol}
        v_lshrrev_b32 v{PK+n}, 20, v{PK+n}
        v_mul_u32_u24 v{PK+n}, 48, v{PK+n}
        """)
    def own_rows(G=GA):
        a(f"s_mov_b64 vcc, s[{S_EV}:{S_EV+1}]")
        for j in range(4): a(f"v_cndmask_b32_dpp v{AC+j}, v{G+4+j}, v{G+j}, vcc quad_perm:[1,0,3,2] {DPP}")
        a("s_not_b64 vcc, vcc")
        for j in range(4): a(f"v_cndmask_b32_dpp v{AC+4+j}, v{G+j}, v{G+4+j}, vcc quad_perm:[1,0,3,2] {DPP}")
    def down(rows=True):
        if rows and opt.get("mix"):
            a(f"s_mov_b64 vcc, s[{S_EV}:{S_EV+1}]")
            for j in range(4): a(f"v_cndmask_b32_dpp v{AC+j}, v{GA+4+j}, v{GA+j}, vcc quad_perm:[1,0,3,2] {DPP}")
            a("s_not_b64 vcc, vcc")
            for j in range(4):
                a(f"v_cndmask_b32_dpp v{AC+4+j}, v{GA+j}, v{GA+4+j}, vcc quad_perm:[1,0,3,2] {DPP}")
                if j == 0: a(f"v_mfma_f32_32x32x16_bf16 {v16(DM)}, {v4(WD[0])}, {v4(AC)}, 0")
            a(f"s_nop 1\nv_mfma_f32_32x32x16_bf16 {v16(DM)}, {v4(WD[1])}, {v4(AC+4)}, {v16(DM)}")
            return
        if rows: own_rows()
        a(f"v_mfma_f32_32x32x16_bf16 {v16(DM)}, {v4(WD[0])}, {v4(AC)}, 0\ns_nop 0")
        a(f"v_mfma_f32_32x32x16_bf16 {v16(DM)}, {v4(WD[1])}, {v4(AC+4)}, {v16(DM)}")
    def cosines(n):
        if opt.get("cheb"):
            a(f"""
            v_mul_f32 v{C0}, 0.15915494, v{AN+n}
            v_cos_f32 v{C0}, v{C0}
            s_nop 0
            v_fma_f32 v{C0+1}, v{C0}, v{C0}, -0.5
            v_fma_mixlo_f16 v{C2+1}, v{C0}, v{C0+1}, 0
            v_cvt_pk_f16_f32 v{C2}, v{C0}, v{C0+1}
            s_nop 1
            """)
            return
        a(f"""
        v_mul_f32 v{C0+1}, 0x40400000, v{AN+n}
        v_mul_f32 v{C0}, 0.15915494, v{AN+n}
        v_cvt_pk_bf16_f32 v{C0+1}, 0, v{C0+1}
        v_cos_f32 v{C0}, v{C0}
        v_mul_f32 v{C0+1}, 0.15915494, v{C0+1}
        v_cos_f32 v{C0+1}, v{C0+1}
        v_fma_mixlo_f16 v{C2+1}, v{C0}, v{C0}, -0.5
        v_cvt_pk_f16_f32 v{C2}, v{C0}, v{C0+1}
        """)
    def basis():
        for l in range(3):
            sel = ["op_sel:[0,0] op_sel_hi:[1,0]", "op_sel:[0,0] op_sel_hi:[1,0]", "op_sel:[0,1] op_sel_hi:[1,1]"][l]
            c = C2 + 1 if l == 1 else C2
            for j in range(4): a(f"v_pk_mul_f16 v{SB+4*l+j}, v{RF+j}, v{c} {sel}")
            if l == 1: a(f"v_mfma_f32_32x32x16_f16 {v16(DG)}, {v4(WG[0])}, {v4(SB)}, 0")
            if l == 2: a(f"v_mfma_f32_32x32x16_f16 {v16(DG)}, {v4(WG[1])}, {v4(SB+4)}, {v16(DG)}")
        a(f"s_nop 0\nv_mfma_f32_32x32x16_f16 {v16(DG)}, {v4(WG[2])}, {v4(SB+8)}, {v16(DG)}")
    def rmw_half(hf, adr, pend):
        for j in range(4 * hf, 4 * hf + 4):
            a(f"v_pk_add_f16 v{AC+j}, v{LK if j == 0 else AC+j}, v{(PE if pend else DM) + j}")
        a(f"ds_write_b128 v{adr}, {v4(AC+4*hf)} offset:{L_ROW+16*hf}")
    def lock(adr):
        a(f"""
        ds_wrxchg_rtn_b32 v{LK}, v{adr}, v{SE} offset:{L_ROW}
        ds_read_b128 {v4(AC+4)}, v{adr} offset:{L_ROW+16}
        ds_read_b128 {v4(AC)}, v{adr} offset:{L_ROW}
        """)
    NTW = NWK * 64; NRW = -(-SMAX // NTW)
    assert NRW == 5
    ZR = RF
    def rbf_round(k):
        X = DG; O = DG + 8; K = DG + 12; D = PE + 4; ro = L_ROW + (48 if k in (1, 3) else 0)
        if k == 2: a(f"v_add_u32 v{T3}, {96*NTW}, v{T3}")
        if k == 4: a(f"v_add_u32 v{T3}, {4*NTW}, v0\nv_mul_u32_u24 v{T3}, 48, v{T3}")
        a(f"ds_write_b128 v{T3}, {v4(ZR)} offset:{ro}\nds_write_b128 v{T3}, {v4(ZR)} offset:{ro+16}")
        if k & 1: a(f"v_and_b32 v{D}, 0xffff0000, v{PE+k//2}")
        else: a(f"v_lshlrev_b32 v{D}, 16, v{PE+k//2}")
        for r in range(0, 8, 2): a(f"v_pk_add_f32 {v2(X+r)}, {v2(D)}, s[{S_CEN+r}:{S_CEN+r+1}] op_sel_hi:[0,1] neg_lo:[0,1] neg_hi:[0,1]")
        RN = opt.get("rnd", "")
        def rnd(c):
            if c in RN:
                for r in range(8): a(f"v_cvt_pk_bf16_f32 v{X+r}, 0, v{X+r}")
        rnd("1")
        for r in range(0, 8, 2): a(f"v_pk_mul_f32 {v2(X+r)}, {v2(X+r)}, {v2(X+r)}")
        rnd("2")
        if "3" in RN:
            for r in range(0, 8, 2): a(f"v_pk_mul_f32 {v2(X+r)}, {v2(X+r)}, {v2(K)} op_sel_hi:[1,0]")
        rnd("3")
        for r in range(0, 8, 2): a(f"v_pk_fma_f32 {v2(X+r)}, {v2(X+r)}, {v2(K+2)}, {v2(K+2)} op_sel:[0,0,1] op_sel_hi:[1,0,1]")
        for r in range(8): a(f"v_exp_f32 v{X+r}, v{X+r}")
        rnd("4")
        for j in range(4): a(f"v_cvt_pk_f16_f32 v{O+j}, v{X+2*j}, v{X+2*j+1}")
        a(f"ds_write_b128 v{T3}, {v4(O)} offset:{ro+32}")
    def mrow_loads(ks, base):
        for k in ks:
            a(f"s_mov_b32 s{S_T0}, {k*NTH*32}")
            a(f"buffer_load_dwordx4 {v4(base(k))}, v{MO}, s[{S_Z}:{S_Z+3}], s{S_T0} offen {opt.get('mpol','')}")
            a(f"buffer_load_dwordx4 {v4(base(k)+4)}, v{MO}, s[{S_Z}:{S_Z+3}], s{S_T0} offen offset:1024 {opt.get('mpol','')}")
    mreg = lambda k: 26 + 8 * k
    MO = IM
    PFEND = E * 32 - 68
    def spf(n):
        for rep in range(n):
            a(f"s_buffer_load_dwordx2 s[{S_DUM}:{S_DUM+1}], s[{S_Y}:{S_Y+3}], s{S_PF}\ns_add_u32 s{S_PF}, s{S_PF}, {NH*NT*128}\ns_min_u32 s{S_PF}, s{S_PF}, {PFEND}")

    a(f"""
    s_cmp_ge_u32 s2, {NT}
    s_cbranch_scc1 B_end
    s_load_dwordx2 s[{P_WS}:{P_WS+1}], s[0:1], 104
    s_load_dwordx2 s[{P_M}:{P_M+1}], s[0:1], 0
    s_load_dwordx2 s[{P_DIST}:{P_DIST+1}], s[0:1], 24
    s_load_dwordx2 s[{P_CEN}:{P_CEN+1}], s[0:1], 40
    s_load_dwordx2 s[{P_OUT}:{P_OUT+1}], s[0:1], 88
    """)
    stamp()
    if opt.get("touch"): code_touch(a, "B", S_M, PA, PA, "B_pc0", "B_codeend", f"v_lshlrev_b32 v{PA}, 7, v0")
    CT = RF
    a(f"""
    s_mov_b32 s3, s2
    s_lshr_b32 s4, s3, 3
    s_and_b32 s2, s3, 7
    s_lshl_b32 s2, s2, 5
    s_or_b32 s2, s2, s4
    s_and_b32 s5, s3, 6
    s_lshl_b32 s5, s5, 4
    s_or_b32 s4, s4, s5
    s_mul_i32 s{S_ROW0}, s4, {2*EB}
    s_movk_i32 s{S_NROW}, {SO}
    s_bitcmp1_b32 s3, 0
    s_cselect_b32 s{S_T0}, 0, s{S_NROW}
    s_cselect_b32 s{S_NROW}, s{S_NROW}, {2*EB - SO}
    s_add_u32 s{S_ROW0}, s{S_ROW0}, s{S_T0}
    s_mov_b32 s{S_TRY}, 0
    B_restart:
    v_lshrrev_b32 v{T2}, 6, v0
    v_lshrrev_b32 v{CT}, 2, v0
    v_readfirstlane_b32 s{S_WAVE}, v{T2}
    v_lshlrev_b32 v{T3}, 12, v{CT}
    v_and_b32 v{LANE}, 63, v0
    s_lshl_b32 s{S_T0}, s2, 4
    s_lshl_b32 s{S_T1}, s{S_ROW0}, 1
    s_lshl_b32 s{S_T2}, s{S_NROW}, 1
    s_mov_b32 m0, 0
    s_mov_b32 s{S_M20}, {-RPL}
    s_mov_b32 s{S_HI}, 0xffff0000
    {f's_movk_i32 s{S_127}, 127' if opt.get('olv') else ''}
    v_and_b32 v{T2}, 1, v0
    v_lshlrev_b32 v{IX+1}, 4, v{T2}
    v_mov_b32 v{IM}, 0xfffff
    v_and_b32 v{T2}, 3, v0
    v_lshlrev_b32 v{RP+1}, 5, v{T2}
    v_mov_b32 v{SE}, {SENT}
    v_mov_b32 v{F0}, 0
    v_lshlrev_b32 v{DG+4}, 4, v0
    s_mov_b32 s{S_NCH}, {WS_OPS - WS_DESC}
    v_cmp_gt_u32 vcc, {WS_EXP + 16 - WS_OPS}, v{DG+4}
    s_mov_b64 {S_PM_}, 0
    s_mov_b32 s{S_ROUND}, 0
    s_mov_b32 s{S_EV}, 0x55555555
    s_mov_b32 s{S_EV+1}, 0x55555555
    s_mov_b32 s{S_JB}, 0
    s_getpc_b64 {S_DRN_}
    B_pc:
    s_add_u32 s{S_DRN}, s{S_DRN}, B_drain-B_pc
    s_addc_u32 s{S_DRN+1}, s{S_DRN+1}, 0
    """)
    a("s_waitcnt lgkmcnt(0)")
    if stamps or opt.get("safe"): a(f"s_mov_b32 s{S_ANY}, 0\ns_mov_b32 s73, 0\ns_mov_b32 s{S_FAST}, 0")
    if opt.get("pst"): stamp()
    srd(a, S_X, P_WS, P_WS + 1, WS_DESC, WS_EXP + 16 - WS_DESC)
    assert F0 + 3 == GA
    a(f"""
    s_cmp_ge_u32 s{S_WAVE}, 3
    s_cbranch_scc1 B_noops
    buffer_load_dwordx4 {v4(DG)}, v{DG+4}, s[{S_X}:{S_X+3}], s{S_NCH} offen
    B_noops:
    buffer_load_dwordx3 v[{F0+1}:{F0+3}], v{T3}, s[{S_X}:{S_X+3}], s{S_T0} offen
    """)
    a(f"s_load_dwordx4 s[{S_CRAW}:{S_CRAW+3}], s[{P_CEN}:{P_CEN+1}], 0")
    def op_addr(epi):
        t = C0
        a(f"v_bfe_u32 v{t}, v0, 5, 1\nv_bfe_u32 v{t+1}, v0, {4 if epi else 2}, 1\nv_xor_b32 v{t}, v{t}, v{t+1}\nv_lshlrev_b32 v{t}, 18, v{t}")
        a(f"v_and_b32 v{t+1}, 3, v0\nv_lshl_or_b32 v{t}, v{t+1}, 4, v{t}")
        if epi: a(f"v_bfe_u32 v{t+1}, v0, 3, 1\nv_lshl_or_b32 v{t}, v{t+1}, 6, v{t}\nv_bfe_u32 v{t+1}, v0, 2, 1\nv_lshl_or_b32 v{t}, v{t+1}, 7, v{t}")
        else: a(f"v_bfe_u32 v{t+1}, v0, 3, 2\nv_lshl_or_b32 v{t}, v{t+1}, 6, v{t}")
    a(f"""
    v_lshlrev_b32 v{T2}, 3, v{CT}
    v_lshlrev_b32 v{T3}, 2, v{CT}
    s_mov_b32 s{S_REC}, s{P_WS}
    s_and_b32 s{S_REC+1}, s{P_WS+1}, 0xffff
    s_or_b32 s{S_REC+1}, s{S_REC+1}, {128 << 16}
    s_mov_b32 s{S_REC+2}, {NT*TLC}
    s_mov_b32 s{S_REC+3}, 0x20000
    s_mov_b32 s{S_M}, s{P_M}
    s_and_b32 s{S_M+1}, s{P_M+1}, 0xffff
    s_or_b32 s{S_M+1}, s{S_M+1}, {32 << 16}
    s_mov_b32 s{S_M+2}, {E}
    s_mov_b32 s{S_M+3}, 0x20000
    s_cmp_ge_u32 s{S_WAVE}, {NWK}
    s_cbranch_scc1 B_helper
    """)
    srd(a, S_Z, P_DIST, P_DIST + 1, f"s{S_T1}", f"s{S_T2}")
    a(f"""
    v_lshlrev_b32 v{C0}, 2, v0
    v_lshlrev_b32 v{C0+1}, 1, v0
    s_movk_i32 s{S_T0}, {8*NTW}
    buffer_load_dword v{PE}, v{C0}, s[{S_Z}:{S_Z+3}], 0 offen
    buffer_load_dword v{PE+1}, v{C0}, s[{S_Z}:{S_Z+3}], 0 offen offset:{4*NTW}
    buffer_load_ushort v{PE+2}, v{C0+1}, s[{S_Z}:{S_Z+3}], s{S_T0} offen
    """)
    op_addr(False)
    a("s_waitcnt vmcnt(3)")
    if opt.get("pst") == 1: stamp()
    def stage():
        a(f"""
        s_mov_b32 exec_lo, 0x11111111
        s_mov_b32 exec_hi, 0x11111111
        ds_write_b64 v{T2}, {v2(F0+1)} offset:{L_AB}
        ds_write_b32 v{T3}, v{F0+3} offset:{L_C}
        s_mov_b64 exec, -1
        """)
    f_load()
    a(f"s_mov_b64 exec, vcc\nds_write_b128 v{DG+4}, {v4(DG)} offset:{L_OPS}")
    stage()
    a("s_waitcnt lgkmcnt(0)\ns_barrier")
    for k in range(5): a(f"ds_read_b128 {v4(WG[0]+4*k)}, v{C0} offset:{L_OPS + 256*k}")
    if not opt.get("pst"): stamp()
    f_mask()
    a(f"""
    v_mul_u32_u24 v{T3}, 96, v0
    {f'v_mov_b32 v{DG+12}, 0xc1200000' if '3' in opt.get('rnd', '') else ''}
    v_mov_b32 v{DG+14}, {'0x3fb8aa3b' if '3' in opt.get('rnd', '') else '0xc166d4ca'}
    v_mov_b32 v{DG+15}, 0x41600000
    v_mov_b64 {v2(ZR)}, 0
    v_mov_b64 {v2(ZR+2)}, 0
    """)
    for r in range(8):
        if r & 1: a(f"s_and_b32 s{S_CEN+r}, s{S_CRAW+r//2}, 0xffff0000")
        else: a(f"s_lshl_b32 s{S_CEN+r}, s{S_CRAW+r//2}, 16")
    K1, K2 = opt.get("rbfk", (0, 4))
    if K1: a(f"s_waitcnt vmcnt(2)")
    for k in range(K1): rbf_round(k)
    a(f"s_setprio 2\ns_waitcnt vmcnt(0)")
    if opt.get("pst") == 2: stamp()
    decode(0); decode(1)
    gathers(0)
    a("s_setprio 0")
    decode(2); decode(3)
    cosines(0)
    for k in range(K1, K2): rbf_round(k)
    assert K2 >= 1
    a(f"s_setprio 2\ns_waitcnt vmcnt(0) lgkmcnt(3)")
    a(f"s_cmp_lg_u32 s{S_TRY}, 0\ns_cbranch_scc1 B_rescale\nB_rescaled:")
    own_rows(); gathers(1); a("s_setprio 0"); down(False)
    if not opt.get("pst"): stamp()
    for k in range(K2, NRW):
        if k == NRW - 1:
            a(f"s_cmp_ge_u32 s{S_WAVE}, {-(-(SMAX - k*NTW)//64)}\ns_cbranch_scc1 B_join")
        rbf_round(k)
    a(f"""
    B_join:
    v_mov_b32 v{T2}, 0
    s_waitcnt lgkmcnt(0)
    s_barrier
    ds_read_b128 {v4(RF)}, v{PK} offset:{L_ROW+32}
    ds_read_b64 {v2(F0+1)}, v{T2} offset:{L_INFO}
    """)
    stamp()
    if stamps: a("s_memtime s[68:69]")
    a(f"""
    s_waitcnt lgkmcnt(0)
    v_readfirstlane_b32 s{S_NCH}, v{F0+1}
    v_readfirstlane_b32 s{S_NR}, v{F0+2}
    """)
    if SPLIT:
        a(f"""
        s_mov_b32 s{S_CNT}, 5
        s_cmp_ge_u32 s{S_NCH}, {4*64}
        s_cselect_b32 s{S_T0}, {4*64}, 0
        s_sub_u32 s{S_SPL}, s{S_NCH}, s{S_T0}
        s_add_u32 s{S_NV}, s{S_NCH}, s{S_T0}
        """)
    basis()
    a("s_nop 3\ns_branch B_mid")
    LN = DM; MK = DM + 4; JJ = DM + 8; TAU = DM + 12; X0 = DG; X1 = DG + 1; X2 = DG + 2
    a(f"""
    B_helper:
    s_mul_i32 s{S_PF}, s2, {NH}
    s_add_u32 s{S_PF}, s{S_PF}, s{S_WAVE}
    s_add_u32 s{S_PF}, s{S_PF}, {SPF - NWK}
    s_lshl_b32 s{S_PF}, s{S_PF}, 7
    s_add_u32 s{S_PF}, s{S_PF}, 60
    s_waitcnt vmcnt(0)
    """)
    stage()
    a(f"""
    s_waitcnt lgkmcnt(0)
    s_barrier
    B_list:
    s_setprio {opt.get("hprio", 1)}
    v_lshlrev_b32 v{T2}, 3, v{LANE}
    v_lshlrev_b32 v{T3}, 2, v{LANE}
    """)
    for u in range(4):
        a(f"ds_read_u16 v{LN+u}, v{T2} offset:{L_AB + 512*u + 6}\nds_read_b32 v{MK+u}, v{T3} offset:{L_C + 256*u}\nv_add_u32 v{TAU+u}, {64*u}, v{LANE}")
    a(f"""
    s_cmp_lg_u32 s{S_ROUND}, 0
    s_waitcnt lgkmcnt(0)
    s_cbranch_scc1 B_generic
    v_add_u32 v{X0}, v{LN}, v{LN+1}
    v_add3_u32 v{X0}, v{X0}, v{LN+2}, v{LN+3}
    v_bcnt_u32_b32 v{X1}, v{MK}, 0
    v_bcnt_u32_b32 v{X1}, v{MK+1}, v{X1}
    v_bcnt_u32_b32 v{X1}, v{MK+2}, v{X1}
    v_bcnt_u32_b32 v{X1}, v{MK+3}, v{X1}
    v_cmp_ne_u32 vcc, v{X0}, v{X1}
    s_mov_b32 s{S_NR}, 1
    s_cbranch_vccz B_count
    B_generic0:
    v_max_u32 v{X0}, v{LN}, v{LN+1}
    v_max3_u32 v{X0}, v{X0}, v{LN+2}, v{LN+3}
    """)
    wave_scan(a, X0, "v_max_u32")
    a(f"""
    s_nop 0
    v_readlane_b32 s{S_NR}, v{X0}, 63
    s_add_u32 s{S_NR}, s{S_NR}, {JMAX-1}
    s_mul_i32 s{S_NR}, s{S_NR}, {(2**20 + JMAX - 1)//JMAX}
    s_lshr_b32 s{S_NR}, s{S_NR}, 20
    B_generic:
    """)
    for u in range(4):
        a(f"v_subrev_u32 v{X1}, s{S_JB}, v{LN+u}\nv_med3_i32 v{X1}, v{X1}, 0, {JMAX}\nv_bfm_b32 v{MK+u}, v{X1}, 0")
    a("B_count:")
    for u in range(4):
        nl = min(64, max(0, 16 * NWK - 64 * u))
        if nl == 0: continue
        if nl < 64: a(f"s_bfm_b64 exec, {nl}, 0")
        a(f"v_add_u32 v{X1}, -1, v{MK+u}\nv_and_b32 v{MK+u}, v{X1}, v{MK+u}\nv_or_b32 v{TAU+u}, 0x100, v{TAU+u}")
        if nl < 64: a("s_mov_b64 exec, -1")
    a(f"""
    v_bcnt_u32_b32 v{X0}, v{MK}, 0
    v_bcnt_u32_b32 v{X0}, v{MK+1}, v{X0}
    v_bcnt_u32_b32 v{X0}, v{MK+2}, v{X0}
    v_bcnt_u32_b32 v{X0}, v{MK+3}, v{X0}
    """)
    wave_scan(a, X0)
    NBIT = opt.get("nbit", 7)
    a(f"""
    v_or_b32 v{X1}, v{MK}, v{MK+1}
    v_readlane_b32 s{S_NCH}, v{X0}, 63
    v_or3_b32 v{X2}, v{X1}, v{MK+2}, v{MK+3}
    s_cmp_gt_u32 s{S_NCH}, {CAP}
    s_cbranch_scc1 B_generic0
    s_sub_u32 s{S_T2}, s{S_WAVE}, {NWK}
    s_mul_i32 s{S_T2}, s{S_T2}, {NBIT}
    s_add_u32 s{S_T1}, s{S_T2}, {NBIT}
    s_cmp_lg_u32 s{S_WAVE}, {NW-1}
    s_cbranch_scc1 B_bits
    s_mov_b32 s{S_T1}, 32
    s_add_u32 s{S_T0}, s{S_NCH}, 15
    s_lshr_b32 s{S_T0}, s{S_T0}, 4
    s_lshl_b32 s{S_T0}, s{S_T0}, 6
    v_mov_b32 v{X0}, 0x8000
    v_add_u32 v{X1}, s{S_NCH}, v{LANE}
    v_lshlrev_b32 v{X1}, 1, v{X1}
    v_mov_b32 v{T2}, 0
    v_mov_b32 v{DG+4}, s{S_T0}
    v_mov_b32 v{DG+5}, s{S_NR}
    ds_write_b16 v{X1}, v{X0} offset:{L_LIST}
    ds_write2_b32 v{T2}, v{T2}, v{T2} offset0:{L_CTR//4} offset1:{L_FLAG//4}
    ds_write_b64 v{T2}, {v2(DG+4)} offset:{L_INFO}
    B_bits:
    s_bfm_b32 s{S_LOW}, s{S_T2}, 0
    """)
    for u in range(4):
        a(f"v_and_b32 v{JJ+u}, s{S_LOW}, v{MK+u}\nv_bcnt_u32_b32 v{JJ+u}, v{JJ+u}, 0")
    a(f"v_add_u32 v{X0}, v{JJ}, v{JJ+1}\nv_add3_u32 v{X0}, v{X0}, v{JJ+2}, v{JJ+3}")
    for u in range(4): a(f"v_lshl_add_u32 v{TAU+u}, v{JJ+u}, 8, v{TAU+u}")
    wave_scan(a, X0)
    a(f"""
    s_nop 0
    v_readlane_b32 s{S_BASE}, v{X0}, 63
    B_bit:
    s_lshl_b32 s{S_BIT}, 1, s{S_T2}
    v_and_b32 v{X0}, s{S_BIT}, v{X2}
    v_cmp_ne_u32 vcc, 0, v{X0}
    s_cbranch_vccz B_bit_next
    """)
    for u in range(4): a(f"v_and_b32 v{JJ+u}, s{S_BIT}, v{MK+u}")
    for u in range(4): a(f"v_cmp_ne_u32 s[{S_CEN+2*u}:{S_CEN+2*u+1}], 0, v{JJ+u}")
    for u in range(4):
        m = f"s[{S_CEN+2*u}:{S_CEN+2*u+1}]"
        a(f"""
        v_mbcnt_lo_u32_b32 v{X0}, s{S_CEN+2*u}, 0
        v_mbcnt_hi_u32_b32 v{X0}, s{S_CEN+2*u+1}, v{X0}
        s_mov_b64 exec, {m}
        v_add_lshl_u32 v{X0}, v{X0}, s{S_BASE}, 1
        s_bcnt1_i32_b64 s{S_T0}, {m}
        ds_write_b16 v{X0}, v{TAU+u} offset:{L_LIST}
        v_add_u32 v{TAU+u}, 0x100, v{TAU+u}
        s_add_u32 s{S_BASE}, s{S_BASE}, s{S_T0}
        s_mov_b64 exec, -1
        """)
    a(f"""
    B_bit_next:
    s_add_u32 s{S_T2}, s{S_T2}, 1
    s_cmp_lt_u32 s{S_T2}, s{S_T1}
    s_cbranch_scc1 B_bit
    s_setprio 0
    s_waitcnt vmcnt(0) lgkmcnt(0)
    s_barrier
    s_mov_b32 s{S_Y}, s{P_M}
    s_and_b32 s{S_Y+1}, s{P_M+1}, 0xffff
    s_mov_b32 s{S_Y+2}, {E*32}
    s_mov_b32 s{S_Y+3}, 0x20000
    B_help:
    """)
    spf(opt.get("spfn", 2))
    a(f"s_cmp_lt_u32 s{S_PF}, {PFEND}\ns_waitcnt lgkmcnt(0)\ns_cbranch_scc1 B_help\ns_branch B_loop_done")
    if opt.get("align") is not None:
        a(".p2align 6")
        for _ in range(opt["align"]): a("s_nop 0")
    a("B_loop:")
    loop_start = len(a.L)
    for b in range(5):
        n = (b + 1) % 5
        a("s_waitcnt vmcnt(0)")
        if b == 4:
            if SPLIT: a(f"s_cmp_ge_u32 s{S_TK}, s{S_SPL}\ns_cbranch_scc1 B_part\nB_part_done:")
            decode(0)
        down()
        if b == 3: f_load()
        gathers(n)
        if b == 1: f_entry_pre()
        if b == 2: f_desc_pre()
        if b == 1 and stamps and not opt.get("trace"): a("s_add_u32 s73, s73, 1")
        if opt.get("trace"):
            a(f"s_mov_b32 s77, m0\ns_memrealtime s[94:95]\ns_waitcnt lgkmcnt(0)\ns_lshr_b32 s75, s73, 1\ns_mov_b32 m0, s75\ns_bitcmp1_b32 s73, 0\ns_cbranch_scc1 B_tr{b}\nv_writelane_b32 v{T2}, s94, m0\ns_branch B_trb{b}\nB_tr{b}:\nv_writelane_b32 v{T3}, s94, m0\nB_trb{b}:\ns_add_u32 s73, s73, 1\ns_mov_b32 m0, s77")
        if b == 0: a("B_mid:")
        if b == 0: f_ticket()
        if b == 1: f_entry()
        if b == 2: f_desc()
        XO = opt.get("xord", 1)
        def xcvt():
            for j in range(8): a(f"v_cvt_pk_f16_f32 v{DM+j}, v{DG+2*j}, v{DG+2*j+1}")
        cosines(n)
        for j in range(8): a(f"v_pk_mul_f32 {v2(DG+2*j)}, {v2(DM+2*j)}, {v2(DG+2*j)}")
        if XO == 2: xcvt()
        if prio: a("s_setprio 2")
        lock(PK + b)
        a(f"ds_read_b128 {v4(RF)}, v{PK+n} offset:{L_ROW+32}")
        nf = 1
        if XO == 1: xcvt()
        a(f"""
        s_waitcnt lgkmcnt({nf})
        v_cmp_ne_u32 vcc, v{LK}, v{SE}
        s_mov_b64 exec, vcc
        """)
        rmw_half(1, PK + b, False); rmw_half(0, PK + b, False)
        if prio: a("s_setprio 0")
        a(f"""
        s_not_b64 {S_LM_}, vcc
        s_cbranch_scc0 B_nolose{b}
        s_and_b64 {S_SAVE_}, {S_LM_}, {S_PM_}
        s_cbranch_scc0 B_stash{b}
        s_swappc_b64 {S_RET_}, {S_DRN_}
        B_stash{b}:
        s_mov_b64 exec, {S_LM_}
        s_or_b64 {S_PM_}, {S_PM_}, {S_LM_}
        """)
        if stamps: a(f"s_bcnt1_i32_b64 s{S_T0}, {S_LM_}\ns_add_u32 s{S_FAST}, s{S_FAST}, s{S_T0}")
        for j in range(4): a(f"v_mov_b64 {v2(PE+2*j)}, {v2(DM+2*j)}")
        a(f"v_mov_b32 v{PA}, v{PK+b}\nB_nolose{b}:")
        a("s_mov_b64 exec, -1")
        if b == 4: a(f"s_cmp_ge_u32 s{S_TK}, s{S_NV if SPLIT else S_NCH}\ns_cbranch_scc1 B_loop_exit")
        elif SPLIT: a(f"s_cmp_eq_u32 s{S_CNT}, {b+1}\ns_cbranch_scc1 B_loop_exit")
        if b == 0: decode(4)
        if b == 3: f_mask()
        if b == 4: decode(1); decode(2); decode(3)
        a("s_waitcnt lgkmcnt(2)")
        basis()
    if opt.get("drop"):
        a.L[loop_start:] = [l for l in a.L[loop_start:] if not any(re.match(p, l.strip()) for p in opt["drop"])]
    a(f"""
    s_branch B_loop
    B_loop_exit:
    s_waitcnt lgkmcnt(2)
    B_loop_done:
    s_add_u32 s{S_ROUND}, s{S_ROUND}, 1
    s_mov_b64 {S_LM_}, -1
    s_cmp_lt_u32 s{S_ROUND}, s{S_NR}
    s_cbranch_scc1 B_again
    """)
    if opt.get("trace"):
        a(f"s_lshl_b32 s{S_T0}, s3, 13\ns_add_u32 s{S_T0}, s{S_T0}, {WS_STAMP + (1 << 20)}")
        srd(a, S_REC, P_WS, P_WS + 1, f"s{S_T0}", 8192)
        a(f"v_lshlrev_b32 v{F0}, 3, v0\nbuffer_store_dwordx2 v[{T2}:{T3}], v{F0}, s[{S_REC}:{S_REC+3}], 0 offen\ns_nop 1")
    NB = -(-SMAX // 64); NE = -(-NB // NW)
    OPU = [14, 18, 22]
    assert NE <= 4
    a(f"""
    s_cmp_lg_u32 s{S_TRY}, 0
    s_cbranch_scc1 B_masks
    """)
    for k in range(NE): a(f"s_mov_b64 s[{S_BAD+2*k}:{S_BAD+2*k+1}], -1")
    a("B_masks:")
    a(f"s_lshl_b32 s{S_T1}, s{S_ROW0}, 5\ns_lshl_b32 s{S_T2}, s{S_NROW}, 5")
    srd(a, S_Z, P_M, P_M + 1, f"s{S_T1}", f"s{S_T2}")
    a(f"""
    v_and_b32 v{T3}, 0x3df, v0
    v_bfe_u32 v{MO}, v0, 5, 1
    v_lshlrev_b32 v{MO}, 4, v{MO}
    v_lshl_add_u32 v{MO}, v{T3}, 5, v{MO}
    """)
    mrow_loads(range(NE), mreg)
    a(f"""
    s_cmp_eq_u64 {S_PM_}, 0
    s_cbranch_scc1 B_nopend
    s_swappc_b64 {S_RET_}, {S_DRN_}
    s_mov_b64 exec, -1
    B_nopend:
    v_mov_b32 v{T2}, 0
    """)
    op_addr(True)
    for k in range(3): a(f"ds_read_b128 {v4(OPU[k])}, v{C0} offset:{L_OPS + 256*(5+k)}")
    a(f"""
    ds_read_b128 {v4(PE+8)}, v{T2} offset:{L_OPS + 2048}
    v_mul_u32_u24 v{T3}, 48, v0
    s_mov_b64 {S_LM_}, 0
    s_mul_i32 s{S_JB}, s{S_TRY}, {RSTEP}
    s_sub_i32 s{S_JB}, s{S_JB}, 674
    v_mov_b32 v{PA+1}, 0x207
    s_waitcnt lgkmcnt(0)
    v_add3_u32 v{PA}, v{PE+8}, v{PE+9}, s{S_JB}
    v_add3_u32 v{PA}, v{PE+10}, v{PE+11}, v{PA}
    v_ldexp_f32 v{PA}, 1.0, v{PA}
    """)
    srd(a, S_Y, P_OUT, P_OUT + 1, f"s{S_T1}", f"s{S_T2}")
    stamp()
    if stamps: a("s_memtime s[70:71]")
    a("s_barrier")
    stamp()
    EB0, EB1 = AC, 2
    def erd(k):
        r = EB0 if k % 2 == 0 else EB1
        if k: a(f"v_add_u32 v{T3}, {48*NTH}, v{T3}")
        a(f"ds_read_b128 {v4(r)}, v{T3} offset:{L_ROW}\nds_read_b128 {v4(r+4)}, v{T3} offset:{L_ROW+16}\nds_read_b128 {v4(r+8)}, v{T3} offset:{L_ROW+32}")
    erd(0)
    for k in range(NE):
        r = EB0 if k % 2 == 0 else EB1
        if k == NE - 1:
            a(f"s_cmp_ge_u32 s{S_WAVE}, {NB - k*NW}\ns_cbranch_scc1 B_epi_done")
        if k + 1 < NE: erd(k + 1)
        a(f"s_waitcnt lgkmcnt({3 if k + 1 < NE else 0})" + (" vmcnt(0)" if k == 0 else ""))
        a(f"""
        v_mfma_f32_32x32x16_f16 {v16(DG)}, {v4(OPU[2])}, {v4(r+8)}, 0
        v_mfma_f32_32x32x16_f16 {v16(DM)}, {v4(OPU[0])}, {v4(r)}, 0
        v_mfma_f32_32x32x16_f16 {v16(DM)}, {v4(OPU[1])}, {v4(r+4)}, {v16(DM)}
        """)
        m = mreg(k)
        for j in range(8):
            a(f"v_lshlrev_b32 v{PE+2*j}, 16, v{m+j}\nv_and_b32 v{PE+2*j+1}, 0xffff0000, v{m+j}")
        for j in range(8):
            a(f"v_pk_mul_f32 {v2(DG+2*j)}, {v2(DG+2*j)}, {v2(PA)} op_sel_hi:[1,0]")
        a(f"v_cmp_class_f32 vcc, v{DM}, v{PA+1}")
        for j in range(8):
            a(f"v_pk_fma_f32 {v2(PE+2*j)}, {v2(DM+2*j)}, {v2(DG+2*j)}, {v2(PE+2*j)}")
        for j in range(8):
            a(f"v_cvt_pk_bf16_f32 v{m+j}, v{PE+2*j}, v{PE+2*j+1}")
        bad = f"s[{S_BAD+2*k}:{S_BAD+2*k+1}]"
        a(f"""
        s_mov_b32 s{S_T0}, {k*NTH*32}
        s_mov_b64 exec, {bad}
        s_cbranch_execz B_nostore{k}
        buffer_store_dwordx4 {v4(m)}, v{MO}, s[{S_Y}:{S_Y+3}], s{S_T0} offen {outpol}
        buffer_store_dwordx4 {v4(m+4)}, v{MO}, s[{S_Y}:{S_Y+3}], s{S_T0} offen offset:1024 {outpol}
        B_nostore{k}:
        s_mov_b64 exec, -1
        s_and_b64 {bad}, {bad}, vcc
        s_or_b64 {S_LM_}, {S_LM_}, {bad}
        """)
    a(f"""
    B_epi_done:
    v_mov_b32 v{T2}, 0
    s_cmp_eq_u64 {S_LM_}, 0
    s_cbranch_scc1 B_clean
    ds_write_b32 v{T2}, v{PA+1} offset:{L_FLAG}
    B_clean:
    s_waitcnt lgkmcnt(0)
    s_barrier
    ds_read_b32 v{T2}, v{T2} offset:{L_FLAG}
    s_add_u32 s{S_TRY}, s{S_TRY}, 1
    s_waitcnt lgkmcnt(0)
    v_readfirstlane_b32 s{S_T0}, v{T2}
    s_cmp_gt_u32 s{S_TRY}, {RMAX}
    s_cselect_b32 s{S_T0}, 0, s{S_T0}
    s_cmp_lg_u32 s{S_T0}, 0
    s_cbranch_scc1 B_redo
    """)
    if stamps:
        a(f"s_waitcnt vmcnt(0)")
        stamp()
        a(f"""
        s_waitcnt lgkmcnt(0)
        s_lshl_b32 s{S_T0}, s3, 10
        s_add_u32 s{S_T0}, s{S_T0}, {WS_STAMP + 524288}
        """)
        srd(a, S_X, P_WS, P_WS + 1, f"s{S_T0}", 1024)
        a(f"s_lshl_b32 s{S_T1}, s{S_WAVE}, 6\nv_mov_b32 v9, s{S_T1}\ns_mov_b64 exec, 1")
        for i in range(nst[0]):
            a(f"v_mov_b32 v8, s{S_ST+2*i}\nbuffer_store_dword v8, v9, s[{S_X}:{S_X+3}], 0 offen offset:{4*i}\ns_nop 1")
        a(f"s_sub_u32 s70, s70, s68\nv_mov_b32 v8, s70\nbuffer_store_dword v8, v9, s[{S_X}:{S_X+3}], 0 offen offset:52\ns_nop 1")
        a(f"v_mov_b32 v8, s{S_FAST}\nbuffer_store_dword v8, v9, s[{S_X}:{S_X+3}], 0 offen offset:56\ns_nop 1")
        a(f"v_mov_b32 v8, s{S_ANY}\nbuffer_store_dword v8, v9, s[{S_X}:{S_X+3}], 0 offen offset:60\ns_nop 1")
        a(f"s_getreg_b32 s{S_T0}, hwreg(HW_REG_XCC_ID, 0, 4)\nv_mov_b32 v8, s{S_T0}\nbuffer_store_dword v8, v9, s[{S_X}:{S_X+3}], 0 offen offset:48")
        a(f"s_nop 1\nv_mov_b32 v8, s73\nbuffer_store_dword v8, v9, s[{S_X}:{S_X+3}], 0 offen offset:44")
    a("B_end:\ns_endpgm")
    a(f"""
    B_again:
    s_cmp_eq_u64 {S_PM_}, 0
    s_cbranch_scc1 B_again1
    s_swappc_b64 {S_RET_}, {S_DRN_}
    s_mov_b64 exec, -1
    B_again1:
    s_add_u32 s{S_JB}, s{S_JB}, {JMAX}
    v_lshrrev_b32 v{F0}, 2, v0
    s_cmp_ge_u32 s{S_WAVE}, {NWK}
    s_waitcnt vmcnt(0) lgkmcnt(0)
    s_barrier
    s_cbranch_scc1 B_list
    """)
    f_desc_pre(); f_desc(); a("s_waitcnt lgkmcnt(0)")
    f_load(); f_mask()
    a("s_waitcnt vmcnt(0)")
    for i in range(4): decode(i)
    gathers(0)
    cosines(0)
    a(f"s_waitcnt vmcnt(0)")
    down(); gathers(1)
    a("s_branch B_join")
    if SPLIT:
        a(f"""
        B_part:
        s_cmp_ge_u32 s{S_TK}, s{S_NV}
        s_cbranch_scc1 B_part_done
        s_sub_u32 s{S_T0}, s{S_TK}, s{S_SPL}
        s_lshr_b32 s{S_T0}, s{S_T0}, 7
        s_sub_u32 s{S_CNT}, 4, s{S_T0}
        v_bfrev_b32 v{F0}, 2
        s_cmp_ge_u32 s{S_CNT}, 3
        s_cbranch_scc1 B_part_mask
        s_cmp_eq_u32 s{S_CNT}, 2
        s_cbranch_scc1 B_part2
        v_mov_b32 v{RB}, v{RB+3}
        v_lshrrev_b32 v{RB+1}, 16, v{RB+7}
        v_lshrrev_b32 v{INV}, 16, v{INV}
        s_branch B_part_mask
        B_part2:
        v_mov_b32 v{RB}, v{RB+6}
        v_mov_b32 v{RB+2}, v{RB+3}
        v_lshrrev_b32 v{RB+1}, 16, v{RB+5}
        v_and_or_b32 v{RB+1}, v{RB+7}, s{S_HI}, v{RB+1}
        v_lshrrev_b32 v{INV}, 12, v{INV}
        B_part_mask:
        s_lshl_b32 s{S_T0}, s{S_CNT}, 2
        s_lshl_b32 s{S_T0}, -1, s{S_T0}
        v_or_b32 v{INV}, s{S_T0}, v{INV}
        s_branch B_part_done
        """)
    a("B_redo:\ns_waitcnt vmcnt(0)\ns_branch B_restart")
    a(f"B_rescale:\ns_mul_i32 s{S_T0}, s{S_TRY}, {-RSTEP}")
    for j in range(8):
        r = WD[0] + j
        a(f"""
        v_lshlrev_b32 v{AC}, 16, v{r}
        v_and_b32 v{AC+1}, 0xffff0000, v{r}
        v_ldexp_f32 v{AC}, v{AC}, s{S_T0}
        v_ldexp_f32 v{AC+1}, v{AC+1}, s{S_T0}
        v_cvt_pk_bf16_f32 v{r}, v{AC}, v{AC+1}
        """)
    a("s_branch B_rescaled")
    a(f"B_drain:\ns_mov_b64 exec, {S_PM_}")
    if opt.get("safe"):
        a(f"""
        s_add_u32 s{S_ANY}, s{S_ANY}, 1
        s_cmp_lt_u32 s{S_ANY}, {opt["safe"]}
        s_cbranch_scc1 B_drain1
        s_mov_b64 {S_PM_}, 0
        s_waitcnt lgkmcnt(0)
        s_setpc_b64 {S_RET_}
        B_drain1:
        """)
    lock(PA)
    a(f"""
    s_waitcnt lgkmcnt(0)
    v_cmp_ne_u32 vcc, v{LK}, v{SE}
    s_mov_b64 exec, vcc
    s_andn2_b64 {S_PM_}, {S_PM_}, vcc
    """)
    rmw_half(1, PA, True); rmw_half(0, PA, True)
    a(f"""
    s_and_b64 {S_SAVE_}, {S_LM_}, {S_PM_}
    s_cbranch_scc1 B_drain
    s_setpc_b64 {S_RET_}
    B_codeend:
    s_endpgm
    """)
    return head(name) + a.text(), desc(name, NV), nst[0]

KNAME = "gather_scatter__molecular_angular_gemnet__graph_kernel"
def full(optA, optB, header=""):
    fused = optB.get("fused", 0)
    if fused: optA = dict(optA, fused=1, dpol="sc1")
    ba, da, na = gen_part(KNAME if fused else "part_kernel", optA)
    bb, db, nb = gen_main(KNAME if fused else "accum_kernel", optB)
    la = f"; @launch kernel=part_kernel grid=({NT},1,1) block=(1024,1,1) lds={LDS}\n"
    lb = f"; @launch kernel=accum_kernel grid=({NT},1,1) block=(1024,1,1) lds={LDS}\n"
    ls = f"; @launch kernel=stamp_kernel grid=(1,1,1) block=(64,1,1) lds=0\n"
    seq = optB.get("launches", "AB")
    if fused:
        lb = ""
        la = f"; @launch {'kernel=' + KNAME + ' ' if 'S' in seq or fused == 2 else ''}grid=({NT},1,1) block=(1024,1,1) lds={LDS}\n"
    lc = f"; @launch kernel=diag_kernel grid=(1,1,1) block=(64,1,1) lds=0\n"
    s = header + "".join({"A": la, "B": lb, "S": ls, "C": lc, "E": f"; @launch kernel=nop_kernel grid=({optB.get('egrid', 8)},1,1) block=(64,1,1) lds=0\n"}[c] for c in seq)
    if "E" in seq:
        bb += head("nop_kernel") + "    s_endpgm\n"; db += desc("nop_kernel", 8)
    if "C" in seq:
        x, y, mul, sh = optB["diag"]
        bb += head("diag_kernel") + f"""
    s_cmp_ge_u32 s2, 1
    s_cbranch_scc1 C_end
    s_memrealtime s[8:9]
    s_load_dwordx2 s[4:5], s[0:1], 104
    s_waitcnt lgkmcnt(0)
    s_add_u32 s4, s4, {WS_STAMP}
    s_addc_u32 s5, s5, 0
    s_load_dword s10, s[4:5], {max(x, 0)}
    s_load_dword s11, s[4:5], {max(y, 0)}
    s_waitcnt lgkmcnt(0)
    {"s_mov_b32 s11, s8" if y < 0 else ""}
    {"s_mov_b32 s10, 0" if x < 0 else ""}
    s_sub_u32 s10, s11, s10
    s_lshr_b32 s10, s10, {sh}
    s_min_u32 s10, s10, 30000
    s_mul_i32 s10, s10, {mul}
    s_add_u32 s10, s10, 500
C_spin:
    s_memrealtime s[12:13]
    s_waitcnt lgkmcnt(0)
    s_sub_u32 s14, s12, s8
    s_cmp_lt_u32 s14, s10
    s_cbranch_scc1 C_spin
C_end:
    s_endpgm
"""
        db += desc("diag_kernel", 8)
    if "S" in seq:
        bb += head("stamp_kernel") + f"""
    s_cmp_ge_u32 s2, 1
    s_cbranch_scc1 S_end
    s_memrealtime s[8:9]
    s_load_dwordx2 s[4:5], s[0:1], 104
    s_waitcnt lgkmcnt(0)
    s_add_u32 s12, s4, {WS_STAMP + 262144}
    s_addc_u32 s13, s5, 0
    s_and_b32 s13, s13, 0xffff
    s_mov_b32 s14, 4
    s_mov_b32 s15, 0x20000
    v_lshlrev_b32 v1, 2, v0
    v_mov_b32 v2, s8
    buffer_store_dword v2, v1, s[12:15], 0 offen
S_end:
    s_endpgm
"""
        db += desc("stamp_kernel", 8)
    s += '.amdgcn_target "amdgcn-amd-amdhsa--gfx950"\n' + ba + bb + da + db
    return s, na, nb
DEF_A = {"ldpol": "nt", "stpol": "sc1", "warm": 1, "warmlines": 256, "warmn": 1, "warmdist": 1, "hold": 5, "ks": (0, 0, 0), "kpre": 3, "jit": 1, "dpol": "sc1", "pat": "ns", "shape": 0, "touch": 2, "ilv": 1}
DEF_B = {"spf": 256 * 256, "spfn": 4, "outpol": "nt"}
if __name__ == "__main__":
    HEADER = open("gather_scatter__molecular_angular_gemnet__graph.s.ref").read().split("; Override launch")[0]
    out = sys.argv[1] if len(sys.argv) > 1 else "gather_scatter__molecular_angular_gemnet__graph.s"
    HEADER += """;
"""
    open(out, "w").write(full(DEF_A, DEF_B, HEADER)[0])
```

```python
from gen import *
import re
L_CTR = 0
L_FLAG = 4
L_INFO = 8
L_AB = 16
L_C = L_AB + 2048
L_LIST = L_C + 1024
JMAX = 11; CAP = NT * JMAX
L_OPS = L_LIST + 2 * (CAP + 64)
SENT = 0x7c017c01
RSTEP = 12; RMAX = 24

def gen_main(name, opt):
    a = Asm()
    NW = 16; NTH = NW * 64
    NWK = opt.get("nwk", 12)
    stamps = opt.get("stamps", False)
    recpol = opt.get("recpol", ""); gpol = opt.get("gpol", ""); outpol = opt.get("outpol", "")
    prio = opt.get("prio", True)
    NH = NW - NWK
    SO = opt.get("so", SO_DEF); SMAX = max(SO, 2 * EB - SO)
    L_ROW = LDS - 48 * SMAX
    assert L_ROW >= L_OPS + 2048 + 16 and L_OPS % 16 == 0 and SO % 2 == 0
    S_ROW0, S_NROW = 4, 5
    SPLIT = opt.get("split", 0)
    S_SPL, S_NV, S_CNT = 42, 43, 44
    SPF = opt.get("spf")
    S_M, S_REC, S_X, S_Y = 8, 12, 16, 20
    S_CEN = 24
    S_WAVE, S_NCH, S_TK, S_JB, S_ROUND, S_NR, S_FAST, S_T0, S_T1, S_T2, S_BASE, S_BIT, S_LOW, S_ANY = range(32, 46)
    S_PM, S_LM, S_RET, S_DRN, S_SAVE = 46, 48, 50, 52, 54
    S_PM_, S_LM_, S_RET_, S_DRN_, S_SAVE_ = (f"s[{x}:{x+1}]" for x in (S_PM, S_LM, S_RET, S_DRN, S_SAVE))
    P_M, P_DIST, P_CEN, P_OUT, P_WS = 56, 58, 60, 62, 64
    S_PF, S_TRY = 66, 67
    S_BAD = 86
    S_M20, S_HI = 6, 7
    S_127 = S_CNT; assert not (SPLIT and opt.get('olv'))
    S_CRAW = 68
    S_ST = 72
    S_EV = 100; S_DUM = 94; S_Z = 96
    IM = 1
    WG = [2, 6, 10]; WD = [14, 18]
    IX = 22; RP = 24; RB = 26; PK = 34; AN = 39; INV = 44; F0 = 45
    GA = 48; RF = 56; DM = 60; DG = 76; AC = 92; TT = 100; SB = AC; PE = 104; PA = 120; LK = 121; SE = 122
    C0 = TT; C2 = 123; LANE = 125; T2 = 126; T3 = 127
    NV = 128
    nst = [0]
    def stamp():
        if stamps:
            a(f"s_memrealtime s[{S_ST+2*nst[0]}:{S_ST+2*nst[0]+1}]"); nst[0] += 1
    v4 = lambda r: f"v[{r}:{r+3}]"
    v2 = lambda r: f"v[{r}:{r+1}]"
    v16 = lambda r: f"v[{r}:{r+15}]"

    def f_ticket():
        if SPLIT: a(f"s_cmp_eq_u32 s{S_CNT}, 5\ns_cselect_b64 exec, -1, 0\nds_append v{F0} offset:{L_CTR}\ns_mov_b64 exec, -1")
        else: a(f"ds_append v{F0} offset:{L_CTR}")
    def f_entry_pre():
        a(f"v_readfirstlane_b32 s{S_TK}, v{F0}")
        if SPLIT:
            a(f"""
            s_sub_u32 s{S_T0}, s{S_TK}, s{S_SPL}
            s_cselect_b32 s{S_T0}, 0, s{S_T0}
            s_lshr_b32 s{S_T0}, s{S_T0}, 4
            s_lshr_b32 s{S_T0}, 0x66220000, s{S_T0}
            s_and_b32 s{S_T0}, s{S_T0}, 15
            s_lshl_b32 s{S_T0}, s{S_T0}, 6
            s_sub_u32 s{S_T0}, s{S_TK}, s{S_T0}
            s_cmp_lt_u32 s{S_TK}, s{S_NV}
            s_cselect_b32 s{S_T0}, s{S_T0}, s{S_NCH}
            """)
        else: a(f"s_min_u32 s{S_T0}, s{S_TK}, s{S_NCH}")
        a(f"""
        v_and_or_b32 v{F0}, v0, 60, s{S_T0}
        v_lshrrev_b32 v{F0}, 1, v{F0}
        """)
    def f_entry(): a(f"ds_read_i16 v{F0}, v{F0} offset:{L_LIST}")
    def f_desc_pre(): a(f"v_and_b32 v{F0+1}, 0xff, v{F0}\nv_lshlrev_b32 v{F0+1}, 3, v{F0+1}")
    def f_desc(): a(f"ds_read_b64 {v2(F0+1)}, v{F0+1} offset:{L_AB}")
    def f_load():
        if opt.get("olv"):
            a(f"""
            v_bfe_u32 v{F0}, v{F0}, 8, 16
            v_and_b32 v{RP}, 0xfff, v{F0+1}
            v_add_u32 v{F0}, s{S_JB}, v{F0}
            v_bfe_u32 v{RB}, v{F0+1}, 5, 15
            v_add_u32 v{RP}, v{RP}, v{F0}
            v_lshrrev_b32 v{RB+1}, 7, v{RP}
            v_bfi_b32 v{RP}, s{S_127}, v{RP}, v{RB}
            v_lshl_or_b32 v{RP}, v{RB+1}, 15, v{RP}
            """)
        else:
            a(f"""
            v_bfe_u32 v{F0}, v{F0}, 8, 22
            v_and_b32 v{RP}, 0xfffff, v{F0+1}
            v_add_u32 v{F0}, s{S_JB}, v{F0}
            v_add_u32 v{RP}, v{RP}, v{F0}
            """)
        a(f"""
        buffer_load_dwordx4 {v4(RB)}, {v2(RP)}, s[{S_REC}:{S_REC+3}], 0 idxen offen {recpol}
        buffer_load_dwordx4 {v4(RB+4)}, {v2(RP)}, s[{S_REC}:{S_REC+3}], 0 idxen offen offset:16 {opt.get('recpol2', recpol)}
        """)
    def f_mask():
        a(f"""
        v_lshrrev_b32 v{INV}, 16, v{F0+2}
        v_and_b32 v{F0+2}, 0xffff, v{F0+2}
        v_lshrrev_b32 v{F0+1}, 20, v{F0+1}
        v_sub_u32 v{INV}, v{F0}, v{INV}
        v_mad_i32_i24 v{F0+2}, v{F0}, s{S_M20}, v{F0+2}
        v_ashrrev_i32 v{INV}, 31, v{INV}
        v_add_u32 v{F0+1}, v{F0+1}, v{F0+2}
        v_med3_i32 v{F0+2}, v{F0+2}, 0, {RPL}
        v_med3_i32 v{F0+1}, v{F0+1}, 0, {RPL}
        v_sub_u32 v{F0+1}, v{F0+1}, v{F0+2}
        v_bfm_b32 v{F0+1}, v{F0+1}, v{F0+2}
        v_and_b32 v{F0}, 3, v0
        v_bfi_b32 v{F0+1}, v{INV}, v{F0+1}, -1
        v_lshrrev_b32 v{INV}, v{F0}, v{F0+1}
        """)
    RAWPK = [RB, RB + 2, RB + 4, RB + 6, RB + 3]
    def decode(i):
        src = [RB + 1, RB + 1, RB + 5, RB + 5, RB + 7][i]
        a(f"v_bfe_i32 v{PK+i}, v{INV}, {4*i}, 1")
        if i in (0, 2): a(f"v_lshlrev_b32 v{AN+i}, 16, v{src}\nv_bfi_b32 v{AN+i}, v{PK+i}, 0, v{AN+i}")
        else: a(f"v_bitop3_b32 v{AN+i}, v{src}, s{S_HI}, v{PK+i} bitop3:0x40")
        a(f"v_or_b32 v{PK+i}, v{PK+i}, v{RAWPK[i]}")
    DPP = "row_mask:0xf bank_mask:0xf"
    def gathers(n, G=GA):
        a(f"""
        v_and_b32_dpp v{IX}, v{PK+n}, v{IM} quad_perm:[0,0,2,2] {DPP}
        buffer_load_dwordx4 {v4(G)}, {v2(IX)}, s[{S_M}:{S_M+3}], 0 idxen offen {gpol}
        v_and_b32_dpp v{IX}, v{PK+n}, v{IM} quad_perm:[1,1,3,3] {DPP}
        buffer_load_dwordx4 {v4(G+4)}, {v2(IX)}, s[{S_M}:{S_M+3}], 0 idxen offen {gpol}
        v_lshrrev_b32 v{PK+n}, 20, v{PK+n}
        v_mul_u32_u24 v{PK+n}, 48, v{PK+n}
        """)
    def own_rows(G=GA):
        a(f"s_mov_b64 vcc, s[{S_EV}:{S_EV+1}]")
        for j in range(4): a(f"v_cndmask_b32_dpp v{AC+j}, v{G+4+j}, v{G+j}, vcc quad_perm:[1,0,3,2] {DPP}")
        a("s_not_b64 vcc, vcc")
        for j in range(4): a(f"v_cndmask_b32_dpp v{AC+4+j}, v{G+j}, v{G+4+j}, vcc quad_perm:[1,0,3,2] {DPP}")
    def down(rows=True):
        if rows and opt.get("mix"):
            a(f"s_mov_b64 vcc, s[{S_EV}:{S_EV+1}]")
            for j in range(4): a(f"v_cndmask_b32_dpp v{AC+j}, v{GA+4+j}, v{GA+j}, vcc quad_perm:[1,0,3,2] {DPP}")
            a("s_not_b64 vcc, vcc")
            for j in range(4):
                a(f"v_cndmask_b32_dpp v{AC+4+j}, v{GA+j}, v{GA+4+j}, vcc quad_perm:[1,0,3,2] {DPP}")
                if j == 0: a(f"v_mfma_f32_32x32x16_bf16 {v16(DM)}, {v4(WD[0])}, {v4(AC)}, 0")
            a(f"s_nop 1\nv_mfma_f32_32x32x16_bf16 {v16(DM)}, {v4(WD[1])}, {v4(AC+4)}, {v16(DM)}")
            return
        if rows: own_rows()
        a(f"v_mfma_f32_32x32x16_bf16 {v16(DM)}, {v4(WD[0])}, {v4(AC)}, 0\ns_nop 0")
        a(f"v_mfma_f32_32x32x16_bf16 {v16(DM)}, {v4(WD[1])}, {v4(AC+4)}, {v16(DM)}")
    def cosines(n):
        if opt.get("cheb"):
            a(f"""
            v_mul_f32 v{C0}, 0.15915494, v{AN+n}
            v_cos_f32 v{C0}, v{C0}
            s_nop 0
            v_fma_f32 v{C0+1}, v{C0}, v{C0}, -0.5
            v_fma_mixlo_f16 v{C2+1}, v{C0}, v{C0+1}, 0
            v_cvt_pk_f16_f32 v{C2}, v{C0}, v{C0+1}
            s_nop 1
            """)
            return
        a(f"""
        v_mul_f32 v{C0+1}, 0x40400000, v{AN+n}
        v_mul_f32 v{C0}, 0.15915494, v{AN+n}
        v_cvt_pk_bf16_f32 v{C0+1}, 0, v{C0+1}
        v_cos_f32 v{C0}, v{C0}
        v_mul_f32 v{C0+1}, 0.15915494, v{C0+1}
        v_cos_f32 v{C0+1}, v{C0+1}
        v_fma_mixlo_f16 v{C2+1}, v{C0}, v{C0}, -0.5
        v_cvt_pk_f16_f32 v{C2}, v{C0}, v{C0+1}
        """)
    def basis():
        for l in range(3):
            sel = ["op_sel:[0,0] op_sel_hi:[1,0]", "op_sel:[0,0] op_sel_hi:[1,0]", "op_sel:[0,1] op_sel_hi:[1,1]"][l]
            c = C2 + 1 if l == 1 else C2
            for j in range(4): a(f"v_pk_mul_f16 v{SB+4*l+j}, v{RF+j}, v{c} {sel}")
            if l == 1: a(f"v_mfma_f32_32x32x16_f16 {v16(DG)}, {v4(WG[0])}, {v4(SB)}, 0")
            if l == 2: a(f"v_mfma_f32_32x32x16_f16 {v16(DG)}, {v4(WG[1])}, {v4(SB+4)}, {v16(DG)}")
        a(f"s_nop 0\nv_mfma_f32_32x32x16_f16 {v16(DG)}, {v4(WG[2])}, {v4(SB+8)}, {v16(DG)}")
    def rmw_half(hf, adr, pend):
        for j in range(4 * hf, 4 * hf + 4):
            a(f"v_pk_add_f16 v{AC+j}, v{LK if j == 0 else AC+j}, v{(PE if pend else DM) + j}")
        a(f"ds_write_b128 v{adr}, {v4(AC+4*hf)} offset:{L_ROW+16*hf}")
    def lock(adr):
        a(f"""
        ds_wrxchg_rtn_b32 v{LK}, v{adr}, v{SE} offset:{L_ROW}
        ds_read_b128 {v4(AC+4)}, v{adr} offset:{L_ROW+16}
        ds_read_b128 {v4(AC)}, v{adr} offset:{L_ROW}
        """)
    NTW = NWK * 64; NRW = -(-SMAX // NTW)
    assert NRW == 5
    ZR = RF
    def rbf_round(k):
        X = DG; O = DG + 8; K = DG + 12; D = PE + 4; ro = L_ROW + (48 if k in (1, 3) else 0)
        if k == 2: a(f"v_add_u32 v{T3}, {96*NTW}, v{T3}")
        if k == 4: a(f"v_add_u32 v{T3}, {4*NTW}, v0\nv_mul_u32_u24 v{T3}, 48, v{T3}")
        a(f"ds_write_b128 v{T3}, {v4(ZR)} offset:{ro}\nds_write_b128 v{T3}, {v4(ZR)} offset:{ro+16}")
        if k & 1: a(f"v_and_b32 v{D}, 0xffff0000, v{PE+k//2}")
        else: a(f"v_lshlrev_b32 v{D}, 16, v{PE+k//2}")
        for r in range(0, 8, 2): a(f"v_pk_add_f32 {v2(X+r)}, {v2(D)}, s[{S_CEN+r}:{S_CEN+r+1}] op_sel_hi:[0,1] neg_lo:[0,1] neg_hi:[0,1]")
        RN = opt.get("rnd", "")
        def rnd(c):
            if c in RN:
                for r in range(8): a(f"v_cvt_pk_bf16_f32 v{X+r}, 0, v{X+r}")
        rnd("1")
        for r in range(0, 8, 2): a(f"v_pk_mul_f32 {v2(X+r)}, {v2(X+r)}, {v2(X+r)}")
        rnd("2")
        if "3" in RN:
            for r in range(0, 8, 2): a(f"v_pk_mul_f32 {v2(X+r)}, {v2(X+r)}, {v2(K)} op_sel_hi:[1,0]")
        rnd("3")
        for r in range(0, 8, 2): a(f"v_pk_fma_f32 {v2(X+r)}, {v2(X+r)}, {v2(K+2)}, {v2(K+2)} op_sel:[0,0,1] op_sel_hi:[1,0,1]")
        for r in range(8): a(f"v_exp_f32 v{X+r}, v{X+r}")
        rnd("4")
        for j in range(4): a(f"v_cvt_pk_f16_f32 v{O+j}, v{X+2*j}, v{X+2*j+1}")
        a(f"ds_write_b128 v{T3}, {v4(O)} offset:{ro+32}")
    def mrow_loads(ks, base):
        for k in ks:
            a(f"s_mov_b32 s{S_T0}, {k*NTH*32}")
            a(f"buffer_load_dwordx4 {v4(base(k))}, v{MO}, s[{S_Z}:{S_Z+3}], s{S_T0} offen {opt.get('mpol','')}")
            a(f"buffer_load_dwordx4 {v4(base(k)+4)}, v{MO}, s[{S_Z}:{S_Z+3}], s{S_T0} offen offset:1024 {opt.get('mpol','')}")
    mreg = lambda k: 26 + 8 * k
    MO = IM
    PFEND = E * 32 - 68
    def spf(n):
        for rep in range(n):
            a(f"s_buffer_load_dwordx2 s[{S_DUM}:{S_DUM+1}], s[{S_Y}:{S_Y+3}], s{S_PF}\ns_add_u32 s{S_PF}, s{S_PF}, {NH*NT*128}\ns_min_u32 s{S_PF}, s{S_PF}, {PFEND}")

    a(f"""
    s_cmp_ge_u32 s2, {NT}
    s_cbranch_scc1 B_end
    s_load_dwordx2 s[{P_WS}:{P_WS+1}], s[0:1], 104
    s_load_dwordx2 s[{P_M}:{P_M+1}], s[0:1], 0
    s_load_dwordx2 s[{P_DIST}:{P_DIST+1}], s[0:1], 24
    s_load_dwordx2 s[{P_CEN}:{P_CEN+1}], s[0:1], 40
    s_load_dwordx2 s[{P_OUT}:{P_OUT+1}], s[0:1], 88
    """)
    stamp()
    if opt.get("touch"): code_touch(a, "B", S_M, PA, PA, "B_pc0", "B_codeend", f"v_lshlrev_b32 v{PA}, 7, v0")
    CT = RF
    a(f"""
    s_mov_b32 s3, s2
    s_lshr_b32 s4, s3, 3
    s_and_b32 s2, s3, 7
    s_lshl_b32 s2, s2, 5
    s_or_b32 s2, s2, s4
    s_and_b32 s5, s3, 6
    s_lshl_b32 s5, s5, 4
    s_or_b32 s4, s4, s5
    s_mul_i32 s{S_ROW0}, s4, {2*EB}
    s_movk_i32 s{S_NROW}, {SO}
    s_bitcmp1_b32 s3, 0
    s_cselect_b32 s{S_T0}, 0, s{S_NROW}
    s_cselect_b32 s{S_NROW}, s{S_NROW}, {2*EB - SO}
    s_add_u32 s{S_ROW0}, s{S_ROW0}, s{S_T0}
    s_mov_b32 s{S_TRY}, 0
    B_restart:
    v_lshrrev_b32 v{T2}, 6, v0
    v_lshrrev_b32 v{CT}, 2, v0
    v_readfirstlane_b32 s{S_WAVE}, v{T2}
    v_lshlrev_b32 v{T3}, 12, v{CT}
    v_and_b32 v{LANE}, 63, v0
    s_lshl_b32 s{S_T0}, s2, 4
    s_lshl_b32 s{S_T1}, s{S_ROW0}, 1
    s_lshl_b32 s{S_T2}, s{S_NROW}, 1
    s_mov_b32 m0, 0
    s_mov_b32 s{S_M20}, {-RPL}
    s_mov_b32 s{S_HI}, 0xffff0000
    {f's_movk_i32 s{S_127}, 127' if opt.get('olv') else ''}
    v_and_b32 v{T2}, 1, v0
    v_lshlrev_b32 v{IX+1}, 4, v{T2}
    v_mov_b32 v{IM}, 0xfffff
    v_and_b32 v{T2}, 3, v0
    v_lshlrev_b32 v{RP+1}, 5, v{T2}
    v_mov_b32 v{SE}, {SENT}
    v_mov_b32 v{F0}, 0
    v_lshlrev_b32 v{DG+4}, 4, v0
    s_mov_b32 s{S_NCH}, {WS_OPS - WS_DESC}
    v_cmp_gt_u32 vcc, {WS_EXP + 16 - WS_OPS}, v{DG+4}
    s_mov_b64 {S_PM_}, 0
    s_mov_b32 s{S_ROUND}, 0
    s_mov_b32 s{S_EV}, 0x55555555
    s_mov_b32 s{S_EV+1}, 0x55555555
    s_mov_b32 s{S_JB}, 0
    s_getpc_b64 {S_DRN_}
    B_pc:
    s_add_u32 s{S_DRN}, s{S_DRN}, B_drain-B_pc
    s_addc_u32 s{S_DRN+1}, s{S_DRN+1}, 0
    """)
    a("s_waitcnt lgkmcnt(0)")
    if stamps or opt.get("safe"): a(f"s_mov_b32 s{S_ANY}, 0\ns_mov_b32 s73, 0\ns_mov_b32 s{S_FAST}, 0")
    if opt.get("pst"): stamp()
    srd(a, S_X, P_WS, P_WS + 1, WS_DESC, WS_EXP + 16 - WS_DESC)
    assert F0 + 3 == GA
    a(f"""
    s_cmp_ge_u32 s{S_WAVE}, 3
    s_cbranch_scc1 B_noops
    buffer_load_dwordx4 {v4(DG)}, v{DG+4}, s[{S_X}:{S_X+3}], s{S_NCH} offen
    B_noops:
    buffer_load_dwordx3 v[{F0+1}:{F0+3}], v{T3}, s[{S_X}:{S_X+3}], s{S_T0} offen
    """)
    a(f"s_load_dwordx4 s[{S_CRAW}:{S_CRAW+3}], s[{P_CEN}:{P_CEN+1}], 0")
    def op_addr(epi):
        t = C0
        a(f"v_bfe_u32 v{t}, v0, 5, 1\nv_bfe_u32 v{t+1}, v0, {4 if epi else 2}, 1\nv_xor_b32 v{t}, v{t}, v{t+1}\nv_lshlrev_b32 v{t}, 18, v{t}")
        a(f"v_and_b32 v{t+1}, 3, v0\nv_lshl_or_b32 v{t}, v{t+1}, 4, v{t}")
        if epi: a(f"v_bfe_u32 v{t+1}, v0, 3, 1\nv_lshl_or_b32 v{t}, v{t+1}, 6, v{t}\nv_bfe_u32 v{t+1}, v0, 2, 1\nv_lshl_or_b32 v{t}, v{t+1}, 7, v{t}")
        else: a(f"v_bfe_u32 v{t+1}, v0, 3, 2\nv_lshl_or_b32 v{t}, v{t+1}, 6, v{t}")
    a(f"""
    v_lshlrev_b32 v{T2}, 3, v{CT}
    v_lshlrev_b32 v{T3}, 2, v{CT}
    s_mov_b32 s{S_REC}, s{P_WS}
    s_and_b32 s{S_REC+1}, s{P_WS+1}, 0xffff
    s_or_b32 s{S_REC+1}, s{S_REC+1}, {128 << 16}
    s_mov_b32 s{S_REC+2}, {NT*TLC}
    s_mov_b32 s{S_REC+3}, 0x20000
    s_mov_b32 s{S_M}, s{P_M}
    s_and_b32 s{S_M+1}, s{P_M+1}, 0xffff
    s_or_b32 s{S_M+1}, s{S_M+1}, {32 << 16}
    s_mov_b32 s{S_M+2}, {E}
    s_mov_b32 s{S_M+3}, 0x20000
    s_cmp_ge_u32 s{S_WAVE}, {NWK}
    s_cbranch_scc1 B_helper
    """)
    srd(a, S_Z, P_DIST, P_DIST + 1, f"s{S_T1}", f"s{S_T2}")
    a(f"""
    v_lshlrev_b32 v{C0}, 2, v0
    v_lshlrev_b32 v{C0+1}, 1, v0
    s_movk_i32 s{S_T0}, {8*NTW}
    buffer_load_dword v{PE}, v{C0}, s[{S_Z}:{S_Z+3}], 0 offen
    buffer_load_dword v{PE+1}, v{C0}, s[{S_Z}:{S_Z+3}], 0 offen offset:{4*NTW}
    buffer_load_ushort v{PE+2}, v{C0+1}, s[{S_Z}:{S_Z+3}], s{S_T0} offen
    """)
    op_addr(False)
    a("s_waitcnt vmcnt(3)")
    if opt.get("pst") == 1: stamp()
    def stage():
        a(f"""
        s_mov_b32 exec_lo, 0x11111111
        s_mov_b32 exec_hi, 0x11111111
        ds_write_b64 v{T2}, {v2(F0+1)} offset:{L_AB}
        ds_write_b32 v{T3}, v{F0+3} offset:{L_C}
        s_mov_b64 exec, -1
        """)
    f_load()
    a(f"s_mov_b64 exec, vcc\nds_write_b128 v{DG+4}, {v4(DG)} offset:{L_OPS}")
    stage()
    a("s_waitcnt lgkmcnt(0)\ns_barrier")
    for k in range(5): a(f"ds_read_b128 {v4(WG[0]+4*k)}, v{C0} offset:{L_OPS + 256*k}")
    if not opt.get("pst"): stamp()
    f_mask()
    a(f"""
    v_mul_u32_u24 v{T3}, 96, v0
    {f'v_mov_b32 v{DG+12}, 0xc1200000' if '3' in opt.get('rnd', '') else ''}
    v_mov_b32 v{DG+14}, {'0x3fb8aa3b' if '3' in opt.get('rnd', '') else '0xc166d4ca'}
    v_mov_b32 v{DG+15}, 0x41600000
    v_mov_b64 {v2(ZR)}, 0
    v_mov_b64 {v2(ZR+2)}, 0
    """)
    for r in range(8):
        if r & 1: a(f"s_and_b32 s{S_CEN+r}, s{S_CRAW+r//2}, 0xffff0000")
        else: a(f"s_lshl_b32 s{S_CEN+r}, s{S_CRAW+r//2}, 16")
    K1, K2 = opt.get("rbfk", (0, 4))
    if K1: a(f"s_waitcnt vmcnt(2)")
    for k in range(K1): rbf_round(k)
    a(f"s_setprio 2\ns_waitcnt vmcnt(0)")
    if opt.get("pst") == 2: stamp()
    decode(0); decode(1)
    gathers(0)
    a("s_setprio 0")
    decode(2); decode(3)
    cosines(0)
    for k in range(K1, K2): rbf_round(k)
    assert K2 >= 1
    a(f"s_setprio 2\ns_waitcnt vmcnt(0) lgkmcnt(3)")
    a(f"s_cmp_lg_u32 s{S_TRY}, 0\ns_cbranch_scc1 B_rescale\nB_rescaled:")
    own_rows(); gathers(1); a("s_setprio 0"); down(False)
    if not opt.get("pst"): stamp()
    for k in range(K2, NRW):
        if k == NRW - 1:
            a(f"s_cmp_ge_u32 s{S_WAVE}, {-(-(SMAX - k*NTW)//64)}\ns_cbranch_scc1 B_join")
        rbf_round(k)
    a(f"""
    B_join:
    v_mov_b32 v{T2}, 0
    s_waitcnt lgkmcnt(0)
    s_barrier
    ds_read_b128 {v4(RF)}, v{PK} offset:{L_ROW+32}
    ds_read_b64 {v2(F0+1)}, v{T2} offset:{L_INFO}
    """)
    stamp()
    if stamps: a("s_memtime s[68:69]")
    a(f"""
    s_waitcnt lgkmcnt(0)
    v_readfirstlane_b32 s{S_NCH}, v{F0+1}
    v_readfirstlane_b32 s{S_NR}, v{F0+2}
    """)
    if SPLIT:
        a(f"""
        s_mov_b32 s{S_CNT}, 5
        s_cmp_ge_u32 s{S_NCH}, {4*64}
        s_cselect_b32 s{S_T0}, {4*64}, 0
        s_sub_u32 s{S_SPL}, s{S_NCH}, s{S_T0}
        s_add_u32 s{S_NV}, s{S_NCH}, s{S_T0}
        """)
    basis()
    a("s_nop 3\ns_branch B_mid")
    LN = DM; MK = DM + 4; JJ = DM + 8; TAU = DM + 12; X0 = DG; X1 = DG + 1; X2 = DG + 2
    a(f"""
    B_helper:
    s_mul_i32 s{S_PF}, s2, {NH}
    s_add_u32 s{S_PF}, s{S_PF}, s{S_WAVE}
    s_add_u32 s{S_PF}, s{S_PF}, {SPF - NWK}
    s_lshl_b32 s{S_PF}, s{S_PF}, 7
    s_add_u32 s{S_PF}, s{S_PF}, 60
    s_waitcnt vmcnt(0)
    """)
    stage()
    a(f"""
    s_waitcnt lgkmcnt(0)
    s_barrier
    B_list:
    s_setprio {opt.get("hprio", 1)}
    v_lshlrev_b32 v{T2}, 3, v{LANE}
    v_lshlrev_b32 v{T3}, 2, v{LANE}
    """)
    for u in range(4):
        a(f"ds_read_u16 v{LN+u}, v{T2} offset:{L_AB + 512*u + 6}\nds_read_b32 v{MK+u}, v{T3} offset:{L_C + 256*u}\nv_add_u32 v{TAU+u}, {64*u}, v{LANE}")
    a(f"""
    s_cmp_lg_u32 s{S_ROUND}, 0
    s_waitcnt lgkmcnt(0)
    s_cbranch_scc1 B_generic
    v_add_u32 v{X0}, v{LN}, v{LN+1}
    v_add3_u32 v{X0}, v{X0}, v{LN+2}, v{LN+3}
    v_bcnt_u32_b32 v{X1}, v{MK}, 0
    v_bcnt_u32_b32 v{X1}, v{MK+1}, v{X1}
    v_bcnt_u32_b32 v{X1}, v{MK+2}, v{X1}
    v_bcnt_u32_b32 v{X1}, v{MK+3}, v{X1}
    v_cmp_ne_u32 vcc, v{X0}, v{X1}
    s_mov_b32 s{S_NR}, 1
    s_cbranch_vccz B_count
    B_generic0:
    v_max_u32 v{X0}, v{LN}, v{LN+1}
    v_max3_u32 v{X0}, v{X0}, v{LN+2}, v{LN+3}
    """)
    wave_scan(a, X0, "v_max_u32")
    a(f"""
    s_nop 0
    v_readlane_b32 s{S_NR}, v{X0}, 63
    s_add_u32 s{S_NR}, s{S_NR}, {JMAX-1}
    s_mul_i32 s{S_NR}, s{S_NR}, {(2**20 + JMAX - 1)//JMAX}
    s_lshr_b32 s{S_NR}, s{S_NR}, 20
    B_generic:
    """)
    for u in range(4):
        a(f"v_subrev_u32 v{X1}, s{S_JB}, v{LN+u}\nv_med3_i32 v{X1}, v{X1}, 0, {JMAX}\nv_bfm_b32 v{MK+u}, v{X1}, 0")
    a("B_count:")
    for u in range(4):
        nl = min(64, max(0, 16 * NWK - 64 * u))
        if nl == 0: continue
        if nl < 64: a(f"s_bfm_b64 exec, {nl}, 0")
        a(f"v_add_u32 v{X1}, -1, v{MK+u}\nv_and_b32 v{MK+u}, v{X1}, v{MK+u}\nv_or_b32 v{TAU+u}, 0x100, v{TAU+u}")
        if nl < 64: a("s_mov_b64 exec, -1")
    a(f"""
    v_bcnt_u32_b32 v{X0}, v{MK}, 0
    v_bcnt_u32_b32 v{X0}, v{MK+1}, v{X0}
    v_bcnt_u32_b32 v{X0}, v{MK+2}, v{X0}
    v_bcnt_u32_b32 v{X0}, v{MK+3}, v{X0}
    """)
    wave_scan(a, X0)
    NBIT = opt.get("nbit", 7)
    a(f"""
    v_or_b32 v{X1}, v{MK}, v{MK+1}
    v_readlane_b32 s{S_NCH}, v{X0}, 63
    v_or3_b32 v{X2}, v{X1}, v{MK+2}, v{MK+3}
    s_cmp_gt_u32 s{S_NCH}, {CAP}
    s_cbranch_scc1 B_generic0
    s_sub_u32 s{S_T2}, s{S_WAVE}, {NWK}
    s_mul_i32 s{S_T2}, s{S_T2}, {NBIT}
    s_add_u32 s{S_T1}, s{S_T2}, {NBIT}
    s_cmp_lg_u32 s{S_WAVE}, {NW-1}
    s_cbranch_scc1 B_bits
    s_mov_b32 s{S_T1}, 32
    s_add_u32 s{S_T0}, s{S_NCH}, 15
    s_lshr_b32 s{S_T0}, s{S_T0}, 4
    s_lshl_b32 s{S_T0}, s{S_T0}, 6
    v_mov_b32 v{X0}, 0x8000
    v_add_u32 v{X1}, s{S_NCH}, v{LANE}
    v_lshlrev_b32 v{X1}, 1, v{X1}
    v_mov_b32 v{T2}, 0
    v_mov_b32 v{DG+4}, s{S_T0}
    v_mov_b32 v{DG+5}, s{S_NR}
    ds_write_b16 v{X1}, v{X0} offset:{L_LIST}
    ds_write2_b32 v{T2}, v{T2}, v{T2} offset0:{L_CTR//4} offset1:{L_FLAG//4}
    ds_write_b64 v{T2}, {v2(DG+4)} offset:{L_INFO}
    B_bits:
    s_bfm_b32 s{S_LOW}, s{S_T2}, 0
    """)
    for u in range(4):
        a(f"v_and_b32 v{JJ+u}, s{S_LOW}, v{MK+u}\nv_bcnt_u32_b32 v{JJ+u}, v{JJ+u}, 0")
    a(f"v_add_u32 v{X0}, v{JJ}, v{JJ+1}\nv_add3_u32 v{X0}, v{X0}, v{JJ+2}, v{JJ+3}")
    for u in range(4): a(f"v_lshl_add_u32 v{TAU+u}, v{JJ+u}, 8, v{TAU+u}")
    wave_scan(a, X0)
    a(f"""
    s_nop 0
    v_readlane_b32 s{S_BASE}, v{X0}, 63
    B_bit:
    s_lshl_b32 s{S_BIT}, 1, s{S_T2}
    v_and_b32 v{X0}, s{S_BIT}, v{X2}
    v_cmp_ne_u32 vcc, 0, v{X0}
    s_cbranch_vccz B_bit_next
    """)
    for u in range(4): a(f"v_and_b32 v{JJ+u}, s{S_BIT}, v{MK+u}")
    for u in range(4): a(f"v_cmp_ne_u32 s[{S_CEN+2*u}:{S_CEN+2*u+1}], 0, v{JJ+u}")
    for u in range(4):
        m = f"s[{S_CEN+2*u}:{S_CEN+2*u+1}]"
        a(f"""
        v_mbcnt_lo_u32_b32 v{X0}, s{S_CEN+2*u}, 0
        v_mbcnt_hi_u32_b32 v{X0}, s{S_CEN+2*u+1}, v{X0}
        s_mov_b64 exec, {m}
        v_add_lshl_u32 v{X0}, v{X0}, s{S_BASE}, 1
        s_bcnt1_i32_b64 s{S_T0}, {m}
        ds_write_b16 v{X0}, v{TAU+u} offset:{L_LIST}
        v_add_u32 v{TAU+u}, 0x100, v{TAU+u}
        s_add_u32 s{S_BASE}, s{S_BASE}, s{S_T0}
        s_mov_b64 exec, -1
        """)
    a(f"""
    B_bit_next:
    s_add_u32 s{S_T2}, s{S_T2}, 1
    s_cmp_lt_u32 s{S_T2}, s{S_T1}
    s_cbranch_scc1 B_bit
    s_setprio 0
    s_waitcnt vmcnt(0) lgkmcnt(0)
    s_barrier
    s_mov_b32 s{S_Y}, s{P_M}
    s_and_b32 s{S_Y+1}, s{P_M+1}, 0xffff
    s_mov_b32 s{S_Y+2}, {E*32}
    s_mov_b32 s{S_Y+3}, 0x20000
    B_help:
    """)
    spf(opt.get("spfn", 2))
    a(f"s_cmp_lt_u32 s{S_PF}, {PFEND}\ns_waitcnt lgkmcnt(0)\ns_cbranch_scc1 B_help\ns_branch B_loop_done")
    if opt.get("align") is not None:
        a(".p2align 6")
        for _ in range(opt["align"]): a("s_nop 0")
    a("B_loop:")
    loop_start = len(a.L)
    for b in range(5):
        n = (b + 1) % 5
        a("s_waitcnt vmcnt(0)")
        if b == 4:
            if SPLIT: a(f"s_cmp_ge_u32 s{S_TK}, s{S_SPL}\ns_cbranch_scc1 B_part\nB_part_done:")
            decode(0)
        down()
        if b == 3: f_load()
        gathers(n)
        if b == 1: f_entry_pre()
        if b == 2: f_desc_pre()
        if b == 1 and stamps and not opt.get("trace"): a("s_add_u32 s73, s73, 1")
        if opt.get("trace"):
            a(f"s_mov_b32 s77, m0\ns_memrealtime s[94:95]\ns_waitcnt lgkmcnt(0)\ns_lshr_b32 s75, s73, 1\ns_mov_b32 m0, s75\ns_bitcmp1_b32 s73, 0\ns_cbranch_scc1 B_tr{b}\nv_writelane_b32 v{T2}, s94, m0\ns_branch B_trb{b}\nB_tr{b}:\nv_writelane_b32 v{T3}, s94, m0\nB_trb{b}:\ns_add_u32 s73, s73, 1\ns_mov_b32 m0, s77")
        if b == 0: a("B_mid:")
        if b == 0: f_ticket()
        if b == 1: f_entry()
        if b == 2: f_desc()
        XO = opt.get("xord", 1)
        def xcvt():
            for j in range(8): a(f"v_cvt_pk_f16_f32 v{DM+j}, v{DG+2*j}, v{DG+2*j+1}")
        cosines(n)
        for j in range(8): a(f"v_pk_mul_f32 {v2(DG+2*j)}, {v2(DM+2*j)}, {v2(DG+2*j)}")
        if XO == 2: xcvt()
        if prio: a("s_setprio 2")
        lock(PK + b)
        a(f"ds_read_b128 {v4(RF)}, v{PK+n} offset:{L_ROW+32}")
        nf = 1
        if XO == 1: xcvt()
        a(f"""
        s_waitcnt lgkmcnt({nf})
        v_cmp_ne_u32 vcc, v{LK}, v{SE}
        s_mov_b64 exec, vcc
        """)
        rmw_half(1, PK + b, False); rmw_half(0, PK + b, False)
        if prio: a("s_setprio 0")
        a(f"""
        s_not_b64 {S_LM_}, vcc
        s_cbranch_scc0 B_nolose{b}
        s_and_b64 {S_SAVE_}, {S_LM_}, {S_PM_}
        s_cbranch_scc0 B_stash{b}
        s_swappc_b64 {S_RET_}, {S_DRN_}
        B_stash{b}:
        s_mov_b64 exec, {S_LM_}
        s_or_b64 {S_PM_}, {S_PM_}, {S_LM_}
        """)
        if stamps: a(f"s_bcnt1_i32_b64 s{S_T0}, {S_LM_}\ns_add_u32 s{S_FAST}, s{S_FAST}, s{S_T0}")
        for j in range(4): a(f"v_mov_b64 {v2(PE+2*j)}, {v2(DM+2*j)}")
        a(f"v_mov_b32 v{PA}, v{PK+b}\nB_nolose{b}:")
        a("s_mov_b64 exec, -1")
        if b == 4: a(f"s_cmp_ge_u32 s{S_TK}, s{S_NV if SPLIT else S_NCH}\ns_cbranch_scc1 B_loop_exit")
        elif SPLIT: a(f"s_cmp_eq_u32 s{S_CNT}, {b+1}\ns_cbranch_scc1 B_loop_exit")
        if b == 0: decode(4)
        if b == 3: f_mask()
        if b == 4: decode(1); decode(2); decode(3)
        a("s_waitcnt lgkmcnt(2)")
        basis()
    if opt.get("drop"):
        a.L[loop_start:] = [l for l in a.L[loop_start:] if not any(re.match(p, l.strip()) for p in opt["drop"])]
    a(f"""
    s_branch B_loop
    B_loop_exit:
    s_waitcnt lgkmcnt(2)
    B_loop_done:
    s_add_u32 s{S_ROUND}, s{S_ROUND}, 1
    s_mov_b64 {S_LM_}, -1
    s_cmp_lt_u32 s{S_ROUND}, s{S_NR}
    s_cbranch_scc1 B_again
    """)
    if opt.get("trace"):
        a(f"s_lshl_b32 s{S_T0}, s3, 13\ns_add_u32 s{S_T0}, s{S_T0}, {WS_STAMP + (1 << 20)}")
        srd(a, S_REC, P_WS, P_WS + 1, f"s{S_T0}", 8192)
        a(f"v_lshlrev_b32 v{F0}, 3, v0\nbuffer_store_dwordx2 v[{T2}:{T3}], v{F0}, s[{S_REC}:{S_REC+3}], 0 offen\ns_nop 1")
    NB = -(-SMAX // 64); NE = -(-NB // NW)
    OPU = [14, 18, 22]
    assert NE <= 4
    a(f"""
    s_cmp_lg_u32 s{S_TRY}, 0
    s_cbranch_scc1 B_masks
    """)
    for k in range(NE): a(f"s_mov_b64 s[{S_BAD+2*k}:{S_BAD+2*k+1}], -1")
    a("B_masks:")
    a(f"s_lshl_b32 s{S_T1}, s{S_ROW0}, 5\ns_lshl_b32 s{S_T2}, s{S_NROW}, 5")
    srd(a, S_Z, P_M, P_M + 1, f"s{S_T1}", f"s{S_T2}")
    a(f"""
    v_and_b32 v{T3}, 0x3df, v0
    v_bfe_u32 v{MO}, v0, 5, 1
    v_lshlrev_b32 v{MO}, 4, v{MO}
    v_lshl_add_u32 v{MO}, v{T3}, 5, v{MO}
    """)
    mrow_loads(range(NE), mreg)
    a(f"""
    s_cmp_eq_u64 {S_PM_}, 0
    s_cbranch_scc1 B_nopend
    s_swappc_b64 {S_RET_}, {S_DRN_}
    s_mov_b64 exec, -1
    B_nopend:
    v_mov_b32 v{T2}, 0
    """)
    op_addr(True)
    for k in range(3): a(f"ds_read_b128 {v4(OPU[k])}, v{C0} offset:{L_OPS + 256*(5+k)}")
    a(f"""
    ds_read_b128 {v4(PE+8)}, v{T2} offset:{L_OPS + 2048}
    v_mul_u32_u24 v{T3}, 48, v0
    s_mov_b64 {S_LM_}, 0
    s_mul_i32 s{S_JB}, s{S_TRY}, {RSTEP}
    s_sub_i32 s{S_JB}, s{S_JB}, 674
    v_mov_b32 v{PA+1}, 0x207
    s_waitcnt lgkmcnt(0)
    v_add3_u32 v{PA}, v{PE+8}, v{PE+9}, s{S_JB}
    v_add3_u32 v{PA}, v{PE+10}, v{PE+11}, v{PA}
    v_ldexp_f32 v{PA}, 1.0, v{PA}
    """)
    srd(a, S_Y, P_OUT, P_OUT + 1, f"s{S_T1}", f"s{S_T2}")
    stamp()
    if stamps: a("s_memtime s[70:71]")
    a("s_barrier")
    stamp()
    EB0, EB1 = AC, 2
    def erd(k):
        r = EB0 if k % 2 == 0 else EB1
        if k: a(f"v_add_u32 v{T3}, {48*NTH}, v{T3}")
        a(f"ds_read_b128 {v4(r)}, v{T3} offset:{L_ROW}\nds_read_b128 {v4(r+4)}, v{T3} offset:{L_ROW+16}\nds_read_b128 {v4(r+8)}, v{T3} offset:{L_ROW+32}")
    erd(0)
    for k in range(NE):
        r = EB0 if k % 2 == 0 else EB1
        if k == NE - 1:
            a(f"s_cmp_ge_u32 s{S_WAVE}, {NB - k*NW}\ns_cbranch_scc1 B_epi_done")
        if k + 1 < NE: erd(k + 1)
        a(f"s_waitcnt lgkmcnt({3 if k + 1 < NE else 0})" + (" vmcnt(0)" if k == 0 else ""))
        a(f"""
        v_mfma_f32_32x32x16_f16 {v16(DG)}, {v4(OPU[2])}, {v4(r+8)}, 0
        v_mfma_f32_32x32x16_f16 {v16(DM)}, {v4(OPU[0])}, {v4(r)}, 0
        v_mfma_f32_32x32x16_f16 {v16(DM)}, {v4(OPU[1])}, {v4(r+4)}, {v16(DM)}
        """)
        m = mreg(k)
        for j in range(8):
            a(f"v_lshlrev_b32 v{PE+2*j}, 16, v{m+j}\nv_and_b32 v{PE+2*j+1}, 0xffff0000, v{m+j}")
        for j in range(8):
            a(f"v_pk_mul_f32 {v2(DG+2*j)}, {v2(DG+2*j)}, {v2(PA)} op_sel_hi:[1,0]")
        a(f"v_cmp_class_f32 vcc, v{DM}, v{PA+1}")
        for j in range(8):
            a(f"v_pk_fma_f32 {v2(PE+2*j)}, {v2(DM+2*j)}, {v2(DG+2*j)}, {v2(PE+2*j)}")
        for j in range(8):
            a(f"v_cvt_pk_bf16_f32 v{m+j}, v{PE+2*j}, v{PE+2*j+1}")
        bad = f"s[{S_BAD+2*k}:{S_BAD+2*k+1}]"
        a(f"""
        s_mov_b32 s{S_T0}, {k*NTH*32}
        s_mov_b64 exec, {bad}
        s_cbranch_execz B_nostore{k}
        buffer_store_dwordx4 {v4(m)}, v{MO}, s[{S_Y}:{S_Y+3}], s{S_T0} offen {outpol}
        buffer_store_dwordx4 {v4(m+4)}, v{MO}, s[{S_Y}:{S_Y+3}], s{S_T0} offen offset:1024 {outpol}
        B_nostore{k}:
        s_mov_b64 exec, -1
        s_and_b64 {bad}, {bad}, vcc
        s_or_b64 {S_LM_}, {S_LM_}, {bad}
        """)
    a(f"""
    B_epi_done:
    v_mov_b32 v{T2}, 0
    s_cmp_eq_u64 {S_LM_}, 0
    s_cbranch_scc1 B_clean
    ds_write_b32 v{T2}, v{PA+1} offset:{L_FLAG}
    B_clean:
    s_waitcnt lgkmcnt(0)
    s_barrier
    ds_read_b32 v{T2}, v{T2} offset:{L_FLAG}
    s_add_u32 s{S_TRY}, s{S_TRY}, 1
    s_waitcnt lgkmcnt(0)
    v_readfirstlane_b32 s{S_T0}, v{T2}
    s_cmp_gt_u32 s{S_TRY}, {RMAX}
    s_cselect_b32 s{S_T0}, 0, s{S_T0}
    s_cmp_lg_u32 s{S_T0}, 0
    s_cbranch_scc1 B_redo
    """)
    if stamps:
        a(f"s_waitcnt vmcnt(0)")
        stamp()
        a(f"""
        s_waitcnt lgkmcnt(0)
        s_lshl_b32 s{S_T0}, s3, 10
        s_add_u32 s{S_T0}, s{S_T0}, {WS_STAMP + 524288}
        """)
        srd(a, S_X, P_WS, P_WS + 1, f"s{S_T0}", 1024)
        a(f"s_lshl_b32 s{S_T1}, s{S_WAVE}, 6\nv_mov_b32 v9, s{S_T1}\ns_mov_b64 exec, 1")
        for i in range(nst[0]):
            a(f"v_mov_b32 v8, s{S_ST+2*i}\nbuffer_store_dword v8, v9, s[{S_X}:{S_X+3}], 0 offen offset:{4*i}\ns_nop 1")
        a(f"s_sub_u32 s70, s70, s68\nv_mov_b32 v8, s70\nbuffer_store_dword v8, v9, s[{S_X}:{S_X+3}], 0 offen offset:52\ns_nop 1")
        a(f"v_mov_b32 v8, s{S_FAST}\nbuffer_store_dword v8, v9, s[{S_X}:{S_X+3}], 0 offen offset:56\ns_nop 1")
        a(f"v_mov_b32 v8, s{S_ANY}\nbuffer_store_dword v8, v9, s[{S_X}:{S_X+3}], 0 offen offset:60\ns_nop 1")
        a(f"s_getreg_b32 s{S_T0}, hwreg(HW_REG_XCC_ID, 0, 4)\nv_mov_b32 v8, s{S_T0}\nbuffer_store_dword v8, v9, s[{S_X}:{S_X+3}], 0 offen offset:48")
        a(f"s_nop 1\nv_mov_b32 v8, s73\nbuffer_store_dword v8, v9, s[{S_X}:{S_X+3}], 0 offen offset:44")
    a("B_end:\ns_endpgm")
    a(f"""
    B_again:
    s_cmp_eq_u64 {S_PM_}, 0
    s_cbranch_scc1 B_again1
    s_swappc_b64 {S_RET_}, {S_DRN_}
    s_mov_b64 exec, -1
    B_again1:
    s_add_u32 s{S_JB}, s{S_JB}, {JMAX}
    v_lshrrev_b32 v{F0}, 2, v0
    s_cmp_ge_u32 s{S_WAVE}, {NWK}
    s_waitcnt vmcnt(0) lgkmcnt(0)
    s_barrier
    s_cbranch_scc1 B_list
    """)
    f_desc_pre(); f_desc(); a("s_waitcnt lgkmcnt(0)")
    f_load(); f_mask()
    a("s_waitcnt vmcnt(0)")
    for i in range(4): decode(i)
    gathers(0)
    cosines(0)
    a(f"s_waitcnt vmcnt(0)")
    down(); gathers(1)
    a("s_branch B_join")
    if SPLIT:
        a(f"""
        B_part:
        s_cmp_ge_u32 s{S_TK}, s{S_NV}
        s_cbranch_scc1 B_part_done
        s_sub_u32 s{S_T0}, s{S_TK}, s{S_SPL}
        s_lshr_b32 s{S_T0}, s{S_T0}, 7
        s_sub_u32 s{S_CNT}, 4, s{S_T0}
        v_bfrev_b32 v{F0}, 2
        s_cmp_ge_u32 s{S_CNT}, 3
        s_cbranch_scc1 B_part_mask
        s_cmp_eq_u32 s{S_CNT}, 2
        s_cbranch_scc1 B_part2
        v_mov_b32 v{RB}, v{RB+3}
        v_lshrrev_b32 v{RB+1}, 16, v{RB+7}
        v_lshrrev_b32 v{INV}, 16, v{INV}
        s_branch B_part_mask
        B_part2:
        v_mov_b32 v{RB}, v{RB+6}
        v_mov_b32 v{RB+2}, v{RB+3}
        v_lshrrev_b32 v{RB+1}, 16, v{RB+5}
        v_and_or_b32 v{RB+1}, v{RB+7}, s{S_HI}, v{RB+1}
        v_lshrrev_b32 v{INV}, 12, v{INV}
        B_part_mask:
        s_lshl_b32 s{S_T0}, s{S_CNT}, 2
        s_lshl_b32 s{S_T0}, -1, s{S_T0}
        v_or_b32 v{INV}, s{S_T0}, v{INV}
        s_branch B_part_done
        """)
    a("B_redo:\ns_waitcnt vmcnt(0)\ns_branch B_restart")
    a(f"B_rescale:\ns_mul_i32 s{S_T0}, s{S_TRY}, {-RSTEP}")
    for j in range(8):
        r = WD[0] + j
        a(f"""
        v_lshlrev_b32 v{AC}, 16, v{r}
        v_and_b32 v{AC+1}, 0xffff0000, v{r}
        v_ldexp_f32 v{AC}, v{AC}, s{S_T0}
        v_ldexp_f32 v{AC+1}, v{AC+1}, s{S_T0}
        v_cvt_pk_bf16_f32 v{r}, v{AC}, v{AC+1}
        """)
    a("s_branch B_rescaled")
    a(f"B_drain:\ns_mov_b64 exec, {S_PM_}")
    if opt.get("safe"):
        a(f"""
        s_add_u32 s{S_ANY}, s{S_ANY}, 1
        s_cmp_lt_u32 s{S_ANY}, {opt["safe"]}
        s_cbranch_scc1 B_drain1
        s_mov_b64 {S_PM_}, 0
        s_waitcnt lgkmcnt(0)
        s_setpc_b64 {S_RET_}
        B_drain1:
        """)
    lock(PA)
    a(f"""
    s_waitcnt lgkmcnt(0)
    v_cmp_ne_u32 vcc, v{LK}, v{SE}
    s_mov_b64 exec, vcc
    s_andn2_b64 {S_PM_}, {S_PM_}, vcc
    """)
    rmw_half(1, PA, True); rmw_half(0, PA, True)
    a(f"""
    s_and_b64 {S_SAVE_}, {S_LM_}, {S_PM_}
    s_cbranch_scc1 B_merge
    s_setpc_b64 {S_RET_}
    B_merge:
    s_mov_b64 exec, {S_SAVE_}
    v_readfirstlane_b32 s{S_T0}, v{PA}
    s_mov_b64 exec, {S_PM_}
    s_nop 0
    v_cmp_eq_u32 {S_SAVE_}, s{S_T0}, v{PA}
    s_bcnt1_i32_b64 s{S_T0}, {S_SAVE_}
    s_cmp_lt_u32 s{S_T0}, 3
    s_cbranch_scc1 B_drain
    s_mov_b64 exec, -1
    """)
    for j in range(8): a(f"v_cndmask_b32 v{AC+j}, 0, v{PE+j}, {S_SAVE_}")
    for m in ("row_shr:1 row_mask:0xf bank_mask:0xf bound_ctrl:1", "row_shr:2 row_mask:0xf bank_mask:0xf bound_ctrl:1",
              "row_shr:4 row_mask:0xf bank_mask:0xf bound_ctrl:1", "row_shr:8 row_mask:0xf bank_mask:0xf bound_ctrl:1",
              "row_bcast:15 row_mask:0xa bank_mask:0xf", "row_bcast:31 row_mask:0xc bank_mask:0xf"):
        for j in range(8): a(f"v_mov_b32_dpp v{PE+8+j}, v{AC+j} {m}")
        for j in range(8): a(f"v_pk_add_f16 v{AC+j}, v{AC+j}, v{PE+8+j}")
    for j in range(8): a(f"v_readlane_b32 s{S_CEN+j}, v{AC+j}, 63")
    a(f"""
    s_andn2_b64 {S_PM_}, {S_PM_}, {S_SAVE_}
    s_ff1_i32_b64 s{S_T0}, {S_SAVE_}
    s_lshl_b64 exec, 1, s{S_T0}
    s_or_b64 {S_PM_}, {S_PM_}, exec
    """)
    for j in range(8): a(f"v_mov_b32 v{PE+j}, s{S_CEN+j}")
    a(f"""
    s_branch B_drain
    B_codeend:
    s_endpgm
    """)
    return head(name) + a.text(), desc(name, NV), nst[0]

KNAME = "gather_scatter__molecular_angular_gemnet__graph_kernel"
def full(optA, optB, header=""):
    fused = optB.get("fused", 0)
    if fused: optA = dict(optA, fused=1, dpol="sc1")
    ba, da, na = gen_part(KNAME if fused else "part_kernel", optA)
    bb, db, nb = gen_main(KNAME if fused else "accum_kernel", optB)
    la = f"; @launch kernel=part_kernel grid=({NT},1,1) block=(1024,1,1) lds={LDS}\n"
    lb = f"; @launch kernel=accum_kernel grid=({NT},1,1) block=(1024,1,1) lds={LDS}\n"
    ls = f"; @launch kernel=stamp_kernel grid=(1,1,1) block=(64,1,1) lds=0\n"
    seq = optB.get("launches", "AB")
    if fused:
        lb = ""
        la = f"; @launch {'kernel=' + KNAME + ' ' if 'S' in seq or fused == 2 else ''}grid=({NT},1,1) block=(1024,1,1) lds={LDS}\n"
    lc = f"; @launch kernel=diag_kernel grid=(1,1,1) block=(64,1,1) lds=0\n"
    s = header + "".join({"A": la, "B": lb, "S": ls, "C": lc, "E": f"; @launch kernel=nop_kernel grid=({optB.get('egrid', 8)},1,1) block=(64,1,1) lds=0\n"}[c] for c in seq)
    if "E" in seq:
        bb += head("nop_kernel") + "    s_endpgm\n"; db += desc("nop_kernel", 8)
    if "C" in seq:
        x, y, mul, sh = optB["diag"]
        bb += head("diag_kernel") + f"""
    s_cmp_ge_u32 s2, 1
    s_cbranch_scc1 C_end
    s_memrealtime s[8:9]
    s_load_dwordx2 s[4:5], s[0:1], 104
    s_waitcnt lgkmcnt(0)
    s_add_u32 s4, s4, {WS_STAMP}
    s_addc_u32 s5, s5, 0
    s_load_dword s10, s[4:5], {max(x, 0)}
    s_load_dword s11, s[4:5], {max(y, 0)}
    s_waitcnt lgkmcnt(0)
    {"s_mov_b32 s11, s8" if y < 0 else ""}
    {"s_mov_b32 s10, 0" if x < 0 else ""}
    s_sub_u32 s10, s11, s10
    s_lshr_b32 s10, s10, {sh}
    s_min_u32 s10, s10, 30000
    s_mul_i32 s10, s10, {mul}
    s_add_u32 s10, s10, 500
C_spin:
    s_memrealtime s[12:13]
    s_waitcnt lgkmcnt(0)
    s_sub_u32 s14, s12, s8
    s_cmp_lt_u32 s14, s10
    s_cbranch_scc1 C_spin
C_end:
    s_endpgm
"""
        db += desc("diag_kernel", 8)
    if "S" in seq:
        bb += head("stamp_kernel") + f"""
    s_cmp_ge_u32 s2, 1
    s_cbranch_scc1 S_end
    s_memrealtime s[8:9]
    s_load_dwordx2 s[4:5], s[0:1], 104
    s_waitcnt lgkmcnt(0)
    s_add_u32 s12, s4, {WS_STAMP + 262144}
    s_addc_u32 s13, s5, 0
    s_and_b32 s13, s13, 0xffff
    s_mov_b32 s14, 4
    s_mov_b32 s15, 0x20000
    v_lshlrev_b32 v1, 2, v0
    v_mov_b32 v2, s8
    buffer_store_dword v2, v1, s[12:15], 0 offen
S_end:
    s_endpgm
"""
        db += desc("stamp_kernel", 8)
    s += '.amdgcn_target "amdgcn-amd-amdhsa--gfx950"\n' + ba + bb + da + db
    return s, na, nb
DEF_A = {"ldpol": "nt", "stpol": "sc1", "warm": 1, "warmlines": 256, "warmn": 1, "warmdist": 1, "hold": 5, "ks": (0, 0, 0), "kpre": 3, "jit": 1, "dpol": "sc1", "pat": "ns", "shape": 0, "touch": 2, "ilv": 1}
DEF_B = {"spf": 256 * 256, "spfn": 4, "outpol": "nt"}
if __name__ == "__main__":
    HEADER = open("gather_scatter__molecular_angular_gemnet__graph.s.ref").read().split("; Override launch")[0]
    out = sys.argv[1] if len(sys.argv) > 1 else "gather_scatter__molecular_angular_gemnet__graph.s"
    HEADER += """;
"""
    open(out, "w").write(full(DEF_A, DEF_B, HEADER)[0])
```
